```python
import torch

def _softmax(x, axis=-1):
    return torch.softmax(x, dim=axis)
def _gelu(x):
    return torch.nn.functional.gelu(x, approximate="tanh")
def _silu(x):
    return torch.nn.functional.silu(x)
def _sigmoid(x):
    return torch.sigmoid(x)
def _layernorm(x, axis=-1, eps=1e-5):
    m = x.mean(dim=axis, keepdim=True)
    v = x.var(dim=axis, keepdim=True, unbiased=False)
    return (x - m) / torch.sqrt(v + eps)
def _scatter_add(tgt, idx, src, axis=0):
    return tgt.clone().index_add_(axis, idx, src)
def _segment_sum(src, seg, n):
    out = torch.zeros((n,) + src.shape[1:], dtype=src.dtype)
    return out.index_add_(0, seg, src)
def _pad(x, pw):
    flat = tuple(v for pair in reversed(pw) for v in pair)
    return torch.nn.functional.pad(x, flat)

kernel_name = 'gated_mix__sliding_block__linear_attn_block__prompt'

def setup_inputs():

    _w = (lambda a: (lambda t: t.to(torch.bfloat16) if t.is_floating_point() else t)(torch.as_tensor(a)))
    def _A_setup():
        B, S, D = 1, 2048, 448
        return {
            "x": _w((lambda *s: torch.randn(*s, dtype=torch.bfloat16) * 0.05)(B, S, D)),
            "wqkv": _w((lambda *s: torch.randn(*s, dtype=torch.bfloat16) * 1.6)(D, 3 * D)),
            "wo": _w((lambda *s: torch.randn(*s, dtype=torch.bfloat16) * 0.05)(D, D)),
        }
    _A_in = _A_setup()

    def _B_setup():
        B, S, D = 1, 2048, 448
        return {
            "x": _w((lambda *s: torch.randn(*s, dtype=torch.bfloat16) * 0.05)(B, S, D)),
            "wqkv": _w((lambda *s: torch.randn(*s, dtype=torch.bfloat16) * 1.6)(D, 3 * D)),
            "wo": _w((lambda *s: torch.randn(*s, dtype=torch.bfloat16) * 0.8)(D, D)),
        }
    _B_in = _B_setup()

    return {
        "A_x": _A_in["x"],
        "A_wqkv": _A_in["wqkv"],
        "A_wo": _A_in["wo"],
        "B_x": _B_in["x"],
        "B_wqkv": _B_in["wqkv"],
        "B_wo": _B_in["wo"],
        "gate_w": _w((lambda *s: torch.randn(*s, dtype=torch.bfloat16) * 0.05)(448) * 16.0),
    }

def reference(A_x, A_wqkv, A_wo, B_x, B_wqkv, B_wo, gate_w):
    def _A_ref(x, wqkv, wo):
        B, S, D = x.shape
        H = 16; Dh = D // H; W = 256
        qkv = (lambda x, *d: x.permute(*d))((x @ wqkv).reshape(B, S, 3, H, Dh), 2, 0, 3, 1, 4)
        q, k, v = qkv[0], qkv[1], qkv[2]
        scores = torch.einsum("bhqd,bhkd->bhqk", q, k) * (Dh ** -0.5)
        idx = torch.arange(S)
        mask = (idx[:, None] - idx[None, :] >= 0) & (idx[:, None] - idx[None, :] < W)
        scores = torch.where(mask[None, None], scores, -1e9)
        p = _softmax(scores, axis=-1)
        o = torch.einsum("bhqk,bhkd->bhqd", p, v)
        return (lambda x, *d: x.permute(*d))(o, 0, 2, 1, 3).reshape(B, S, D) @ wo

    def _B_ref(x, wqkv, wo):
        B, S, D = x.shape
        H = 16; Dh = D // H
        qkv = (lambda x, *d: x.permute(*d))((x @ wqkv).reshape(B, S, 3, H, Dh), 2, 0, 3, 1, 4)
        q, k, v = qkv[0], qkv[1], qkv[2]
        phi = lambda t: torch.where(t > 0, t + 1, torch.exp(t)) + 1e-6
        pq, pk = phi(q), phi(k)
        kv = torch.einsum("bhsd,bhse->bhde", pk, v)
        z = torch.einsum("bhsd->bhd", pk)
        num = torch.einsum("bhqd,bhde->bhqe", pq, kv)
        den = torch.einsum("bhqd,bhd->bhq", pq, z)[..., None] + 1e-6
        o = num / den
        return (lambda x, *d: x.permute(*d))(o, 0, 2, 1, 3).reshape(B, S, D) @ wo

    x = A_x
    g = _sigmoid((x * gate_w).sum(-1, keepdims=True))
    a = _A_ref(x, A_wqkv, A_wo)
    b = _B_ref(x, B_wqkv, B_wo)
    return g * a + (1 - g) * b
```

```python
import sys
S=2048; D=448; H=16; DH=28
QKV_OFF=0
KV_OFF=16<<20
OA_OFF=20<<20
OB_OFF=24<<20

def srd(A, d, b, size):
    A(f"s_mov_b32 s{d}, s{b}\ns_mov_b32 s{d+1}, s{b+1}\ns_mov_b32 s{d+2}, {size}\ns_mov_b32 s{d+3}, 0x20000")

def head(A, name):
    A(f".globl {name}\n.p2align 8\n.type {name},@function\n{name}:")

def loadptrs(A):
    A("s_load_dwordx16 s[4:19], s[0:1], 0\ns_load_dwordx4 s[20:23], s[0:1], 64\ns_waitcnt lgkmcnt(0)")

def desc(name, vg=128):
    return f""".p2align 6
.amdhsa_kernel {name}
  .amdhsa_next_free_vgpr {vg}
  .amdhsa_next_free_sgpr 102
  .amdhsa_accum_offset {vg}
  .amdhsa_group_segment_fixed_size 0
  .amdhsa_kernarg_size 80
  .amdhsa_user_sgpr_count 2
  .amdhsa_user_sgpr_kernarg_segment_ptr 1
  .amdhsa_system_sgpr_workgroup_id_x 1
.end_amdhsa_kernel
"""

def gen(probe=None, extra_empty=0, round_scores=False):
    L=[]; A=L.append
    launches=[]
    if probe: launches.append(("probe_kernel", 256, 256, 65536))
    launches += [("qkv_kernel", S*42, 64, 0), ("attn_kernel", S*H//64, 64, 0), ("kv_kernel", 16*13, 64, 0), ("ob_kernel", S*H//64, 64, 0), ("out_kernel", S*7, 64, 0)]
    for i in range(extra_empty): launches.append(("empty_kernel", 256, 256, 0))
    for n,g,b,l in launches:
        A(f"; @launch kernel={n} grid=({g},1,1) block=({b},1,1) lds={l}")
    A('.amdgcn_target "amdgcn-amd-amdhsa--gfx950"\n.text')
    head(A,"qkv_kernel")
    A(f"s_cmp_ge_u32 s2, {S*42}\ns_cbranch_scc1 Lq_end")
    loadptrs(A)
    A(f"s_mov_b32 s3, {(2**32+41)//42}\ns_mul_hi_u32 s24, s2, s3   ; row\ns_mul_i32 s25, s24, 42\ns_sub_u32 s25, s2, s25   ; colblock")
    A("s_cmp_ge_u32 s25, 21\ns_cselect_b32 s26, s12, s6\ns_cselect_b32 s27, s13, s7\ns_cselect_b32 s28, 21, 0\ns_cselect_b32 s29, 1, 0\ns_sub_u32 s25, s25, s28")
    srd(A,32,4,S*D*2); srd(A,36,26,448*1344*2); srd(A,40,22,0x10000000)
    A("s_lshl_b32 s30, s25, 6\nv_add_u32 v1, s30, v0\nv_lshlrev_b32 v1, 1, v1")
    A("s_mul_i32 s31, s24, 896\nv_mov_b32 v2, s31")
    A("v_mov_b32 v3, 0\ns_mov_b32 s44, 0\ns_mov_b32 s45, 0")
    A("Lq_loop:")
    A("buffer_load_dword v4, v2, s[32:35], s44 offen")
    A("buffer_load_ushort v5, v1, s[36:39], s45 offen\nbuffer_load_ushort v6, v1, s[36:39], s45 offen offset:2688")
    A("s_waitcnt vmcnt(0)")
    A("v_lshlrev_b32 v7, 16, v4\nv_and_b32 v8, 0xffff0000, v4\nv_lshlrev_b32 v5, 16, v5\nv_lshlrev_b32 v6, 16, v6")
    A("v_fmac_f32 v3, v7, v5\nv_fmac_f32 v3, v8, v6")
    A("s_add_u32 s44, s44, 4\ns_add_u32 s45, s45, 5376\ns_cmp_lt_u32 s44, 896\ns_cbranch_scc1 Lq_loop")
    A("v_cvt_pk_bf16_f32 v3, v3, v3")
    A(f"s_mul_i32 s46, s29, {S*2688}\ns_mul_i32 s47, s24, 2688\ns_add_u32 s46, s46, s47")
    A("buffer_store_short v3, v1, s[40:43], s46 offen")
    A("Lq_end:\ns_endpgm")
    head(A,"attn_kernel")
    A(f"s_cmp_ge_u32 s2, {S*H//64}\ns_cbranch_scc1 La_end")
    loadptrs(A)
    srd(A,40,22,0x10000000)
    A("s_lshr_b32 s24, s2, 5   ; head\ns_and_b32 s25, s2, 31\ns_lshl_b32 s25, s25, 6\nv_add_u32 v1, s25, v0  ; row i")
    A("s_mul_i32 s26, s24, 56")
    A("v_mul_u32_u24 v2, 2688, v1\nv_add_u32 v2, s26, v2")
    for j in range(14):
        A(f"buffer_load_dword v{10+j}, v2, s[40:43], 0 offen offset:{4*j}")
    A("s_waitcnt vmcnt(0)")
    for j in range(14):
        A(f"v_lshlrev_b32 v{30+2*j}, 16, v{10+j}\nv_and_b32 v{31+2*j}, 0xffff0000, v{10+j}")
    for j in range(28): A(f"v_mov_b32 v{60+j}, 0")
    A("v_mov_b32 v4, 0xff800000  ; m\nv_mov_b32 v5, 0  ; l")
    A("s_mov_b32 s31, 0x3e418c5a")
    import struct
    sc = struct.unpack("<I", struct.pack("<f", 28**-0.5))[0]
    l2e = struct.unpack("<I", struct.pack("<f", 1.4426950408889634))[0]
    A(f"s_mov_b32 s31, {sc}\ns_mov_b32 s33, {l2e}")
    for ps in range(2):
        A("s_mov_b32 s30, 0")
        A(f"La_loop{ps}:")
        A("v_subrev_u32 v6, s30, v1     ; j = i - t")
        A("v_cmp_le_i32 vcc, 0, v6\nv_max_i32 v7, 0, v6")
        A("v_mul_u32_u24 v7, 2688, v7\nv_add_u32 v7, s26, v7")
        for j in range(14):
            A(f"buffer_load_dword v{10+j}, v7, s[40:43], 0 offen offset:{896+4*j}")
        if ps==1:
            for j in range(14):
                A(f"buffer_load_dword v{90+j}, v7, s[40:43], 0 offen offset:{1792+4*j}")
        A("s_waitcnt vmcnt(0)")
        A("v_mov_b32 v8, 0")
        for j in range(14):
            A(f"v_lshlrev_b32 v9, 16, v{10+j}\nv_fmac_f32 v8, v9, v{30+2*j}\nv_and_b32 v9, 0xffff0000, v{10+j}\nv_fmac_f32 v8, v9, v{31+2*j}")
        if round_scores:
            A("v_cvt_pk_bf16_f32 v8, v8, v8\nv_lshlrev_b32 v8, 16, v8")
            A("v_mov_b32 v9, s31\nv_cvt_pk_bf16_f32 v9, v9, v9\nv_lshlrev_b32 v9, 16, v9")
            A("v_mul_f32 v8, s31, v8\nv_cvt_pk_bf16_f32 v8, v8, v8\nv_lshlrev_b32 v8, 16, v8")
        else:
            A("v_mul_f32 v8, s31, v8")
        A("v_mov_b32 v9, 0xff800000\nv_cndmask_b32 v8, v9, v8, vcc")
        if ps==0:
            A("v_max_f32 v4, v4, v8")
        else:
            A("v_sub_f32 v8, v8, v4\nv_mul_f32 v8, s33, v8\nv_exp_f32 v8, v8\ns_nop 0\nv_add_f32 v5, v5, v8")
            for j in range(14):
                A(f"v_lshlrev_b32 v9, 16, v{90+j}\nv_fmac_f32 v{60+2*j}, v9, v8\nv_and_b32 v9, 0xffff0000, v{90+j}\nv_fmac_f32 v{61+2*j}, v9, v8")
        A(f"s_add_u32 s30, s30, 1\ns_cmp_lt_u32 s30, 256\ns_cbranch_scc1 La_loop{ps}")
    A("v_rcp_f32 v5, v5\ns_nop 0")
    A(f"v_mul_u32_u24 v2, 896, v1\nv_add_u32 v2, s26, v2\ns_mov_b32 s34, {OA_OFF}")
    for j in range(14):
        A(f"v_mul_f32 v{60+2*j}, v{60+2*j}, v5\nv_mul_f32 v{61+2*j}, v{61+2*j}, v5\nv_cvt_pk_bf16_f32 v9, v{60+2*j}, v{61+2*j}\nbuffer_store_dword v9, v2, s[40:43], s34 offen offset:{4*j}\ns_nop 1")
    A("La_end:\ns_endpgm")
    def phi(r,t):
        A(f"v_mul_f32 v{t}, s33, v{r}\nv_exp_f32 v{t}, v{t}\nv_cmp_lt_f32 vcc, 0, v{r}\nv_add_f32 v{r}, 1.0, v{r}\ns_nop 1\nv_cndmask_b32 v{r}, v{t}, v{r}, vcc")
        A(f"v_cvt_pk_bf16_f32 v{r}, v{r}, v{r}\nv_lshlrev_b32 v{r}, 16, v{r}\nv_add_f32 v{r}, s35, v{r}\nv_cvt_pk_bf16_f32 v{r}, v{r}, v{r}\nv_lshlrev_b32 v{r}, 16, v{r}")
    eps = struct.unpack("<I", struct.pack("<f", 1e-6))[0]
    head(A,"kv_kernel")
    A(f"s_cmp_ge_u32 s2, {16*13}\ns_cbranch_scc1 Lk_end")
    loadptrs(A)
    srd(A,40,22,0x10000000)
    A(f"s_mov_b32 s33, {l2e}\ns_mov_b32 s35, {eps}")
    A(f"s_mov_b32 s3, {(2**32+12)//13}\ns_mul_hi_u32 s24, s2, s3\ns_mul_i32 s25, s24, 13\ns_sub_u32 s25, s2, s25\ns_lshl_b32 s25, s25, 6\nv_add_u32 v1, s25, v0")
    A(f"s_mov_b32 s3, {(2**32+28)//29}\nv_mul_hi_u32 v2, s3, v1   ; d\nv_mul_u32_u24 v3, 29, v2\nv_sub_u32 v3, v1, v3  ; e")
    A("v_min_u32 v2, 27, v2")
    A(f"s_mul_i32 s26, s24, 56\ns_add_u32 s26, s26, {S*2688}")
    A("v_lshlrev_b32 v4, 1, v2\nv_add_u32 v4, s26, v4  ; k off\nv_min_u32 v5, 27, v3\nv_lshlrev_b32 v5, 1, v5\nv_add_u32 v5, s26, v5")
    A("v_cmp_eq_u32 s[50:51], 28, v3")
    A("v_mov_b32 v6, 0\ns_mov_b32 s30, 0")
    A("Lk_loop:")
    A("buffer_load_ushort v7, v4, s[40:43], s30 offen offset:896\nbuffer_load_ushort v8, v5, s[40:43], s30 offen offset:1792\ns_waitcnt vmcnt(0)")
    A("v_lshlrev_b32 v7, 16, v7\nv_lshlrev_b32 v8, 16, v8\nv_cndmask_b32 v8, v8, 1.0, s[50:51]")
    phi(7,9)
    A("v_fmac_f32 v6, v7, v8")
    A(f"s_add_u32 s30, s30, 2688\ns_cmp_lt_u32 s30, {S*2688}\ns_cbranch_scc1 Lk_loop")
    A("v_cvt_pk_bf16_f32 v6, v6, v6\nv_lshlrev_b32 v6, 16, v6")
    A(f"s_mul_i32 s27, s24, {812*4}\ns_add_u32 s27, s27, {KV_OFF}\nv_lshlrev_b32 v2, 2, v1")
    A("v_cmp_gt_u32 vcc, 812, v1\ns_and_saveexec_b64 s[52:53], vcc\ns_cbranch_execz Lk_end")
    A("buffer_store_dword v6, v2, s[40:43], s27 offen")
    A("Lk_end:\ns_endpgm")
    head(A,"ob_kernel")
    A(f"s_cmp_ge_u32 s2, {S*H//64}\ns_cbranch_scc1 Lo_end")
    loadptrs(A)
    srd(A,40,22,0x10000000)
    A(f"s_mov_b32 s33, {l2e}\ns_mov_b32 s35, {eps}")
    A("s_lshr_b32 s24, s2, 5   ; head\ns_and_b32 s25, s2, 31\ns_lshl_b32 s25, s25, 6\nv_add_u32 v1, s25, v0  ; row i")
    A(f"s_mul_i32 s26, s24, 56\ns_add_u32 s27, s26, {S*2688}")
    A("v_mul_u32_u24 v2, 2688, v1\nv_add_u32 v2, s27, v2")
    for j in range(14):
        A(f"buffer_load_dword v{10+j}, v2, s[40:43], 0 offen offset:{4*j}")
    A("s_waitcnt vmcnt(0)")
    for j in range(14):
        A(f"v_lshlrev_b32 v{30+2*j}, 16, v{10+j}\nv_and_b32 v{31+2*j}, 0xffff0000, v{10+j}")
    for j in range(28): phi(30+j, 9)
    for j in range(29): A(f"v_mov_b32 v{60+j}, 0")
    A(f"s_mul_i32 s28, s24, {812*4}\ns_add_u32 s28, s28, {KV_OFF}\nv_mov_b32 v3, s28")
    for d in range(28):
        for e in range(29):
            A(f"buffer_load_dword v{90+e}, v3, s[40:43], 0 offen offset:{(d*29+e)*4}")
        A("s_waitcnt vmcnt(0)")
        for e in range(29):
            A(f"v_fmac_f32 v{60+e}, v{30+d}, v{90+e}")
    A("v_add_f32 v88, s35, v88\nv_rcp_f32 v5, v88\ns_nop 0")
    A(f"v_mul_u32_u24 v2, 896, v1\nv_add_u32 v2, s26, v2\ns_mov_b32 s34, {OB_OFF}")
    for j in range(14):
        A(f"v_mul_f32 v{60+2*j}, v{60+2*j}, v5\nv_mul_f32 v{61+2*j}, v{61+2*j}, v5\nv_cvt_pk_bf16_f32 v9, v{60+2*j}, v{61+2*j}\nbuffer_store_dword v9, v2, s[40:43], s34 offen offset:{4*j}\ns_nop 1")
    A("Lo_end:\ns_endpgm")
    head(A,"out_kernel")
    A(f"s_cmp_ge_u32 s2, {S*7}\ns_cbranch_scc1 Lf_end")
    loadptrs(A)
    srd(A,32,4,S*D*2); srd(A,36,8,448*896); srd(A,40,22,0x10000000); srd(A,44,14,448*896); srd(A,48,16,896); srd(A,52,18,S*896)
    A(f"s_mov_b32 s60, {l2e}")
    A(f"s_mov_b32 s3, {(2**32+6)//7}\ns_mul_hi_u32 s24, s2, s3   ; row\ns_mul_i32 s25, s24, 7\ns_sub_u32 s25, s2, s25")
    A("s_lshl_b32 s30, s25, 6\nv_add_u32 v1, s30, v0\nv_lshlrev_b32 v1, 1, v1")
    A("s_mul_i32 s31, s24, 896\nv_mov_b32 v2, s31")
    A(f"v_add_u32 v20, {OA_OFF}, v2\nv_add_u32 v21, {OB_OFF}, v2\nv_mov_b32 v22, 0")
    A("v_mov_b32 v3, 0\nv_mov_b32 v10, 0\nv_mov_b32 v11, 0\ns_mov_b32 s56, 0\ns_mov_b32 s57, 0")
    A("Lf_loop:")
    A("buffer_load_dword v4, v20, s[40:43], s56 offen\nbuffer_load_dword v12, v21, s[40:43], s56 offen")
    A("buffer_load_dword v13, v2, s[32:35], s56 offen\nbuffer_load_dword v14, v22, s[48:51], s56 offen")
    A("buffer_load_ushort v5, v1, s[36:39], s57 offen\nbuffer_load_ushort v6, v1, s[36:39], s57 offen offset:896")
    A("buffer_load_ushort v15, v1, s[44:47], s57 offen\nbuffer_load_ushort v16, v1, s[44:47], s57 offen offset:896")
    A("s_waitcnt vmcnt(0)")
    A("v_lshlrev_b32 v7, 16, v4\nv_and_b32 v8, 0xffff0000, v4\nv_lshlrev_b32 v5, 16, v5\nv_lshlrev_b32 v6, 16, v6\nv_fmac_f32 v3, v7, v5\nv_fmac_f32 v3, v8, v6")
    A("v_lshlrev_b32 v7, 16, v12\nv_and_b32 v8, 0xffff0000, v12\nv_lshlrev_b32 v15, 16, v15\nv_lshlrev_b32 v16, 16, v16\nv_fmac_f32 v10, v7, v15\nv_fmac_f32 v10, v8, v16")
    A("v_lshlrev_b32 v7, 16, v13\nv_and_b32 v8, 0xffff0000, v13\nv_lshlrev_b32 v15, 16, v14\nv_and_b32 v16, 0xffff0000, v14\nv_fmac_f32 v11, v7, v15\nv_fmac_f32 v11, v8, v16")
    A("s_add_u32 s56, s56, 4\ns_add_u32 s57, s57, 1792\ns_cmp_lt_u32 s56, 896\ns_cbranch_scc1 Lf_loop")
    A("v_mul_f32 v11, s60, v11\nv_sub_f32 v11, 0, v11\nv_exp_f32 v11, v11\ns_nop 0\nv_add_f32 v11, 1.0, v11\nv_rcp_f32 v11, v11\ns_nop 0")
    A("v_sub_f32 v12, 1.0, v11\nv_mul_f32 v10, v10, v12\nv_fmac_f32 v10, v3, v11\nv_cvt_pk_bf16_f32 v10, v10, v10")
    A("buffer_store_short v10, v1, s[52:55], s31 offen")
    A("Lf_end:\ns_endpgm")
    names=["qkv_kernel","attn_kernel","kv_kernel","ob_kernel","out_kernel"]
    if extra_empty:
        head(A,"empty_kernel"); A("s_endpgm"); names.append("empty_kernel")
    if probe:
        probe(A); names.append("probe_kernel")
    A('.section .rodata,"a"')
    for n in names: A(desc(n))
    return "\n".join(L)+"\n"

if __name__=="__main__":
    open(sys.argv[1],"w").write(gen(round_scores=(len(sys.argv)>2 and sys.argv[2]=="r")))
```

```python
import sys
from naive import gen, head, loadptrs, srd
AMP = 400
def spin(A, sreg, lab):
    A(f"s_mul_i32 s70, {sreg}, {AMP}")
    A(f"s_memtime s[72:73]\ns_waitcnt lgkmcnt(0)")
    A(f"{lab}:\ns_sleep 4\ns_memtime s[74:75]\ns_waitcnt lgkmcnt(0)\ns_sub_u32 s76, s74, s72\ns_cmp_lt_u32 s76, s70\ns_cbranch_scc1 {lab}")

def probe_load(which):
    def p(A):
        head(A, "probe_kernel")
        A("s_memtime s[60:61]")
        A("s_cmp_ge_u32 s2, 256\ns_cbranch_scc1 Lp_end")
        loadptrs(A)
        srd(A,32,4,2048*896); srd(A,36,6,448*2688); srd(A,40,12,448*2688)
        A("v_lshlrev_b32 v1, 4, v0")
        A("s_mul_i32 s24, s2, 7168\ns_mul_i32 s25, s2, 4704")
        A("buffer_load_dwordx4 v[4:7], v1, s[32:35], s24 offen")
        A("s_add_u32 s26, s24, 3072\nbuffer_load_dwordx4 v[8:11], v1, s[32:35], s26 offen")
        A("buffer_load_dwordx4 v[12:15], v1, s[36:39], s25 offen")
        A("buffer_load_dwordx4 v[16:19], v1, s[40:43], s25 offen")
        A("s_waitcnt vmcnt(0)\ns_memtime s[62:63]\ns_waitcnt lgkmcnt(0)\ns_sub_u32 s62, s62, s60")
        if which != "all":
            A(f"s_cmp_lg_u32 s2, {which}\ns_cbranch_scc1 Lp_end")
        spin(A, "s62", "Lp_spin")
        A("Lp_end:\ns_endpgm")
    return p

def probe_skew(A):
    head(A, "probe_kernel")
    A("s_memrealtime s[60:61]")
    A("s_cmp_ge_u32 s2, 256\ns_cbranch_scc1 Lp_end")
    loadptrs(A)
    srd(A,40,22,0x10000000)
    A("v_mov_b32 v2, s60\ns_lshl_b32 s24, s2, 2\ns_add_u32 s24, s24, 0x4000000\nv_mov_b32 v1, s24")
    A("buffer_store_dword v2, v1, s[40:43], 0 offen sc1\ns_waitcnt vmcnt(0)")
    A("s_cmp_lg_u32 s2, 0\ns_cbranch_scc1 Lp_end")
    A("s_mov_b32 s62, 100")
    spin(A, "s62", "Lp_w")
    A("v_lshlrev_b32 v1, 2, v0\ns_mov_b32 s24, 0x4000000\nbuffer_load_dword v2, v1, s[40:43], s24 offen sc1\ns_waitcnt vmcnt(0)")
    A("v_subrev_u32 v2, s60, v2\nv_add_u32 v2, 1000, v2")
    A("v_mov_b32 v3, v2")
    A("v_mov_b32 v4, 0\nv_mov_b32 v5, 0\nv_mov_b32 v6, 0x7fffffff\nds_write_b32 v4, v5\nds_write_b32 v4, v6 offset:4\ns_waitcnt lgkmcnt(0)\ns_barrier")
    A("ds_max_u32 v4, v2\nds_min_u32 v4, v2 offset:4\ns_waitcnt lgkmcnt(0)\ns_barrier")
    A("ds_read_b32 v5, v4\nds_read_b32 v6, v4 offset:4\ns_waitcnt lgkmcnt(0)\nv_sub_u32 v5, v5, v6\ns_nop 0\nv_readfirstlane_b32 s62, v5")
    A("s_nop 3\ns_mul_i32 s62, s62, 24")
    spin(A, "s62", "Lp_spin")
    A("Lp_end:\ns_endpgm")

def probe_none(A):
    head(A, "probe_kernel")
    A("s_endpgm")

out = "cdna_kernels/"
open(out+"pb_none.s","w").write(gen(probe=probe_none))
open(out+"pb_load37.s","w").write(gen(probe=probe_load(37)))
open(out+"pb_load200.s","w").write(gen(probe=probe_load(200)))
open(out+"pb_loadall.s","w").write(gen(probe=probe_load("all")))
open(out+"pb_skew.s","w").write(gen(probe=probe_skew))
open(out+"pb_empty100.s","w").write(gen(probe=probe_none, extra_empty=100))
```

```python
import re

_VR = re.compile(r"^-?\|?(?:abs\()?v(\d+)\)?\|?$")
_VRR = re.compile(r"^v\[(\d+):(\d+)\]$")
_SR = re.compile(r"^s(\d+)$")
_SRR = re.compile(r"^s\[(\d+):(\d+)\]$")

TRANS = ("v_exp_f32", "v_log_f32", "v_rcp_f32", "v_rsq_f32", "v_sqrt_f32", "v_sin_f32", "v_cos_f32", "v_exp_f16", "v_rcp_iflag_f32")


def vregs(tok):
    m = _VR.match(tok)
    if m:
        return {int(m.group(1))}
    m = _VRR.match(tok)
    if m:
        return set(range(int(m.group(1)), int(m.group(2)) + 1))
    return set()


def sregs(tok):
    m = _SR.match(tok)
    if m:
        return {int(m.group(1))}
    m = _SRR.match(tok)
    if m:
        return set(range(int(m.group(1)), int(m.group(2)) + 1))
    if tok == "vcc":
        return {"vcc"}
    if tok == "exec":
        return {"exec"}
    if tok == "m0":
        return {"m0"}
    return set()


class Ins:
    def __init__(self, text):
        self.text = text
        t = text.split(";")[0].strip()
        self.label = None
        self.op = None
        self.ops = []
        if not t:
            return
        if t.endswith(":"):
            self.label = t[:-1]
            return
        if t.startswith("."):
            return
        parts = t.split(None, 1)
        self.op = parts[0]
        rest = parts[1] if len(parts) > 1 else ""
        toks = [x.strip() for x in rest.split(",")]
        ops = []
        self.mods = []
        for i, x in enumerate(toks):
            sp = x.split()
            if not sp:
                continue
            ops.append(sp[0])
            self.mods += sp[1:]
        self.ops = ops
        self.classify()

    def classify(self):
        op = self.op
        o = self.ops
        self.vw = set(); self.vr = set(); self.sw = set(); self.sr = set()
        self.kind = "other"
        self.srcC = set(); self.srcAB = set()
        base = re.sub(r"_(e32|e64|sdwa|dpp)$", "", op)
        self.base = base
        if op.startswith("v_mfma"):
            self.kind = "mfma"
            self.vw = vregs(o[0]); self.srcAB = vregs(o[1]) | vregs(o[2]); self.srcC = vregs(o[3])
            self.vr = self.srcAB | self.srcC
            self.passes = 8 if "32x32" in op else 4
        elif op.startswith("v_"):
            self.kind = "valu"
            if base.startswith("v_cmp"):
                self.sw = sregs(o[0])
                for x in o[1:]:
                    self.vr |= vregs(x); self.sr |= sregs(x)
            elif base in ("v_readfirstlane_b32", "v_readlane_b32"):
                self.sw = sregs(o[0]); self.vr = vregs(o[1])
                for x in o[2:]:
                    self.sr |= sregs(x)
            elif base.startswith("v_permlane"):
                self.vw = vregs(o[0]) | vregs(o[1]); self.vr = set(self.vw)
            else:
                self.vw = vregs(o[0])
                rest = o[1:]
                if base in ("v_add_co_u32", "v_addc_co_u32", "v_sub_co_u32", "v_subb_co_u32"):
                    self.sw = sregs(o[1]); rest = o[2:]
                for x in rest:
                    self.vr |= vregs(x); self.sr |= sregs(x)
                if base in ("v_fmac_f32", "v_dot2c_f32_bf16", "v_writelane_b32") or "UNUSED_PRESERVE" in " ".join(self.mods):
                    self.vr |= self.vw
            self.trans = base in TRANS
            self.dpp = any(m.startswith(("row_", "quad_perm", "wave_", "bank_mask", "row_mask")) for m in self.mods)
        elif op.startswith("ds_"):
            self.kind = "ds"
            if op.startswith("ds_read") or op.startswith("ds_bpermute") or op.startswith("ds_swizzle") or "_rtn" in op:
                self.vw = vregs(o[0])
                for x in o[1:]:
                    self.vr |= vregs(x)
            else:
                for x in o:
                    self.vr |= vregs(x)
        elif op.startswith("buffer_") or op.startswith("global_"):
            self.kind = "vmem"
            lds = "lds" in self.mods or "_lds_" in op
            self.lds = lds
            self.store = "store" in op or "atomic" in op
            self.wide = op.endswith("x4") or op.endswith("x3")
            self.data = set()
            if op.startswith("buffer_"):
                if lds or op in ("buffer_wbl2", "buffer_inv"):
                    for x in o:
                        self.vr |= vregs(x); self.sr |= sregs(x)
                elif self.store:
                    self.data = vregs(o[0])
                    for x in o:
                        self.vr |= vregs(x); self.sr |= sregs(x)
                else:
                    self.vw = vregs(o[0])
                    for x in o[1:]:
                        self.vr |= vregs(x); self.sr |= sregs(x)
            else:
                if lds:
                    for x in o:
                        self.vr |= vregs(x); self.sr |= sregs(x)
                elif self.store:
                    self.data = vregs(o[1])
                    for x in o:
                        self.vr |= vregs(x); self.sr |= sregs(x)
                else:
                    self.vw = vregs(o[0])
                    for x in o[1:]:
                        self.vr |= vregs(x); self.sr |= sregs(x)
            if lds:
                self.sr |= {"m0"}
        elif op.startswith("s_"):
            self.kind = "salu"
            if op.startswith(("s_cmp", "s_cbranch", "s_branch", "s_waitcnt", "s_barrier", "s_nop", "s_endpgm", "s_sleep", "s_setprio", "s_bitcmp")):
                for x in o:
                    self.sr |= sregs(x)
            else:
                if o:
                    self.sw = sregs(o[0])
                for x in o[1:]:
                    self.sr |= sregs(x)
                if "saveexec" in op:
                    self.sw |= {"exec"}

    def states(self):
        if self.op is None:
            return 0
        if self.op == "s_nop":
            return int(self.ops[0], 0) + 1
        return 1


def need(p, c):
    n = 0
    if p.kind == "valu":
        if c.kind == "mfma" and p.vw & c.vr:
            n = max(n, 2)
        if c.kind == "valu":
            if p.trans and not c.trans and p.vw & c.vr:
                n = max(n, 1)
            if p.trans and c.trans and p.vw & c.vr:
                n = max(n, 1)
            if c.base.startswith("v_permlane") and p.vw & c.vr:
                n = max(n, 2)
            if c.base in ("v_readfirstlane_b32", "v_readlane_b32") and p.vw & c.vr:
                n = max(n, 1)
            if c.dpp and p.vw & c.vr:
                n = max(n, 2)
            if p.sw & c.sr:
                n = max(n, 4 if c.base in ("v_readlane_b32", "v_writelane_b32") else 2)
            if "vcc" in p.sw and c.base in ("v_cndmask_b32", "v_addc_co_u32", "v_subb_co_u32") and "vcc" in c.sr:
                n = max(n, 2)
        if c.kind == "vmem" and p.sw & c.sr:
            n = max(n, 5)
        if c.kind == "salu" and p.sw & c.sr:
            n = max(n, 1)
    if p.kind == "mfma":
        big = 12 if p.passes == 8 else 8
        if c.kind == "valu" and p.vw & (c.vr | c.vw):
            n = max(n, big)
        if c.kind in ("ds", "vmem") and p.vw & (c.vr | c.vw):
            n = max(n, big)
        if c.kind == "mfma":
            if p.vw & c.srcAB:
                n = max(n, big)
            if p.vw & c.srcC and not (p.vw == c.srcC and p.passes == c.passes):
                n = max(n, 10 if p.passes == 8 else 6)
        if c.kind == "valu" and p.srcC & c.vw:
            n = max(n, 7 if p.passes == 8 else 3)
        if c.kind in ("ds", "vmem") and p.srcC & c.vw:
            n = max(n, 7 if p.passes == 8 else 3)
    if p.kind == "salu":
        if "m0" in p.sw and c.kind == "vmem" and c.lds:
            n = max(n, 1)
        if "exec" in p.sw and c.kind == "valu" and c.dpp:
            n = max(n, 5)
    if p.kind == "vmem" and p.store and p.wide:
        if c.kind == "valu" and p.data & c.vw:
            n = max(n, 2)
        elif c.kind in ("ds", "vmem", "mfma") and p.data & c.vw:
            n = max(n, 2)
    if p.kind == "ds" and p.op in ("ds_write_b128", "ds_write_b96"):
        if c.kind == "valu" and (p.vr & c.vw):
            n = max(n, 2)
    return n


MAXLOOK = 14


def pad_hazards(lines):
    ins = [Ins(l) for l in lines]
    total = 0
    while True:
        labels = {x.label: i for i, x in enumerate(ins) if x.label}
        jumps = {}
        for i, x in enumerate(ins):
            if x.op and (x.op.startswith("s_cbranch") or x.op == "s_branch"):
                jumps.setdefault(labels[x.ops[0]], []).append(i)

        def preds(i):
            r = []
            k = i - 1
            while k >= 0 and ins[k].op is None:
                if ins[k].label is not None:
                    r += jumps.get(k, [])
                k -= 1
            if k >= 0 and ins[k].op not in ("s_branch", "s_endpgm", "s_setpc_b64"):
                r.append(k)
            return r

        out = []
        changed = False
        extra = {}
        for i, c in enumerate(ins):
            if c.op is None or c.op == "s_nop":
                out.append(c)
                continue
            worst = 0
            stack = [(p, 0) for p in preds(i)]
            seen = set()
            while stack:
                j, dist = stack.pop()
                if dist >= MAXLOOK or (j, dist) in seen:
                    continue
                seen.add((j, dist))
                p = ins[j]
                n = need(p, c)
                if n > dist:
                    worst = max(worst, n - dist)
                for q in preds(j):
                    stack.append((q, dist + p.states() + extra.get(j, 0)))
            if worst > 0:
                out.append(Ins("s_nop %d" % (worst - 1)))
                extra[i] = worst
                total += 1
                changed = True
            out.append(c)
        ins = out
        if not changed:
            break
    return [x.text for x in ins], total


class Cnt:
    def __init__(self, asm, name, maxv):
        self.asm = asm; self.name = name; self.maxv = maxv
        self.q = []

    def issue(self, tag=None):
        self.q.append(tag)

    def n_after(self, tag):
        idx = [i for i, t in enumerate(self.q) if t == tag]
        if not idx:
            return None
        return len(self.q) - 1 - idx[-1]

    def wait(self, tag):
        n = self.n_after(tag)
        if n is None:
            return
        n2 = min(n, self.maxv)
        self.asm.e("s_waitcnt %s(%d)" % (self.name, n2))
        self.q = self.q[len(self.q) - n2:] if n2 else []

    def wait_all(self):
        self.asm.e("s_waitcnt %s(0)" % self.name)
        self.q = []

    def clear(self):
        self.q = []


class Asm:
    def __init__(self):
        self.lines = []
        self.vm = Cnt(self, "vmcnt", 63)
        self.lg = Cnt(self, "lgkmcnt", 15)
        self.uid = 0

    def e(self, text):
        for l in text.split("\n"):
            self.lines.append(l)

    def lab(self, prefix="L"):
        self.uid += 1
        return "%s_%d" % (prefix, self.uid)

    def ds(self, text, tag=None):
        self.e(text); self.lg.issue(tag)

    def vmem(self, text, tag=None):
        self.e(text); self.vm.issue(tag)

    def finish(self):
        lines, n = pad_hazards(self.lines)
        return "\n".join(lines) + "\n", n
```

```python
import sys, struct, math
from asmlib import Asm

NAME = "gated_mix__sliding_block__linear_attn_block__prompt_kernel"


def f2u(x):
    return struct.unpack("<I", struct.pack("<f", x))[0]


LOG2E = 1.4426950408889634
WS_K = 0
WS_V = 2 << 20
WS_OA = 4 << 20
WS_OB = 6 << 20
WS_KVP = 8 << 20
FS = 128
WS_FL = 9 << 20
FL_K = WS_FL
FL_V = FL_K + 1024 * FS
FL_OA = FL_V + 1024 * FS
FL_OB = FL_OA + 1024 * FS
FL_P = FL_OB + 1024 * FS
WS_SIZE = 10 << 20
WS_PROF = 12 << 20
OOB = 0x70000000
SPIN_MAX = 1 << 16

sX, sWm, sWS, sG, sWO1, sWO2, sOUT = 24, 28, 32, 36, 40, 44, 48
sW, sRT, sE, sRB, sHP, sTY, sH, sN, sGT = 56, 57, 58, 59, 60, 61, 62, 63, 64
sXo, sWo, sL = 65, 66, 67
sT0, sT1, sT2, sT3, sT4, sT5 = 52, 53, 54, 55, 68, 69
sMASK = 70
sP0 = 70

vLane, vL16, vOX, vOW = 1, 2, 3, 4
vXA = 5
vWA = 9
vGV, vGZ, vGA, vT = 12, 13, 14, 15
ACC0, ACC1 = 16, 32
WB = 48
XR = 112
PK = 224
PK2 = 232
vGate = 240
vT1, vT2, vT3, vT4 = 241, 242, 243, 244
vNV, vNZ = 246, 247

def XS(c): return 16384 * c
RING = 114688
A_WK = [RING + 8192 * c for c in range(6)] + [RING]
A_WV = [0, 8192, 24576, 32768, RING + 8192, RING + 16384, RING + 24576]
A_WQ = [49152, 57344, 73728, 81920, 98304, 106496, RING + 32768]
KAREA, VAREA = 0, 49152
B_WK = [RING + 16384 * (c % 3) for c in range(7)]
B_WV = [x + 8192 for x in B_WK]
B_WQ = [8192 * c for c in range(7)]
B_KVS = 65536
B_EXS = 98304
WO1_LDS = 106496
WO2_LDS = 0
RED = 57344


def vr(b, n):
    return "v[%d:%d]" % (b, b + n - 1)


def sr(b, n=4):
    return "s[%d:%d]" % (b, b + n - 1)


class Gen:
    def __init__(self, prof=False, stop=None, opts=None):
        self.a = Asm()
        self.prof = prof
        self.stop = stop
        self.o = dict(LA=[2] * 7 + [3] * 14, LB=[2] * 7 + [3] * 7)
        if opts:
            self.o.update(opts)
        self.nstamp = 0

    def srd(self, d, b, size):
        self.a.e("s_mov_b32 s%d, s%d\ns_mov_b32 s%d, s%d\ns_mov_b32 s%d, %d\ns_mov_b32 s%d, 0x20000" % (d, b, d + 1, b + 1, d + 2, size, d + 3))

    def stamp(self, idx):
        if not self.prof:
            return
        a = self.a
        a.e("s_memtime s[100:101]")
        a.e("s_waitcnt lgkmcnt(0)")
        a.lg.clear()
        a.e("s_sub_u32 s100, s100, s3")
        a.e("v_writelane_b32 v255, s100, %d" % idx)

    def dma(self, voff, srd, sbase, imm, lds, tag, flags=""):
        a = self.a
        a.e("s_add_u32 m0, s%d, %d" % (sL, lds))
        a.e("s_add_u32 s%d, s%d, %d" % (sT0, sbase, imm))
        a.vmem("buffer_load_dwordx4 v%d, %s, s%d offen %slds" % (voff, sr(srd), sT0, flags), tag)

    def barrier(self):
        self.a.e("s_barrier")

    def set_flag(self, soff):
        a = self.a
        a.e("v_mov_b32 v%d, s%d" % (vT1, sN))
        a.e("v_mov_b32 v%d, 0" % vT2)
        a.e("s_mov_b64 exec, 1")
        a.vmem("buffer_store_dword v%d, v%d, %s, s%d offen sc1" % (vT1, vT2, sr(sWS), soff), "flag")
        a.e("s_mov_b64 exec, -1")

    def poll(self, offs):
        a = self.a
        lab = a.lab("Lpoll"); done = a.lab("Lpolld")
        a.lg.wait_all()
        a.e("s_mov_b32 s%d, 0" % sT5)
        a.e(lab + ":")
        for i, o in enumerate(offs):
            a.e("s_load_dword s%d, s[22:23], s%d glc" % (sP0 + 16 + i, o))
        a.e("s_add_u32 s%d, s%d, 1" % (sT5, sT5))
        a.e("s_cmp_gt_u32 s%d, %d" % (sT5, SPIN_MAX))
        a.e("s_waitcnt lgkmcnt(0)")
        a.e("s_cbranch_scc1 " + done)
        for i, o in enumerate(offs):
            a.e("s_cmp_eq_u32 s%d, s%d" % (sP0 + 16 + i, sN))
            a.e("s_cbranch_scc0 " + lab)
        a.e(done + ":")

    def waddr(self, slot):
        k = slot >> 16
        return vWA + k, slot - (k << 16)

    def step_loads(self, st):
        a = self.a
        g = st["g"]; c = st["c"]
        if st["x"]:
            self.dma(vOX, sX, sXo, c * 128, XS(c), ("ld", g))
            self.dma(vOX, sX, sXo, c * 128 + 64 * 896, XS(c) + 8192, ("ld", g))
        for (mat, slot) in st["w"]:
            if st["gate"]:
                a.e("s_mov_b32 exec_lo, 0xF7F77F7F\ns_mov_b32 exec_hi, 0xF7F77F7F")
            self.dma(vOW, sWm, sWo, c * 64 * 2688 + mat * 896, slot, ("ld", g))
            if st["gate"]:
                a.vm.wait("gate")
                m = 0xFF << (8 * c)
                a.e("s_mov_b32 exec_lo, 0x%x\ns_mov_b32 exec_hi, 0x%x" % (m & 0xFFFFFFFF, m >> 32))
                a.e("v_add_u32 v%d, %d, v%d" % (vT, slot, vGA))
                a.ds("ds_write_b64 v%d, v[%d:%d]" % (vT, vGV, vGZ), "gw")
                a.e("s_mov_b64 exec, -1")

    def step_reads(self, st):
        a = self.a
        g = st["g"]; c = st["c"]
        nm = len(st["w"])
        buf = WB + (g % 2) * 16 * st["bufm"]
        if st["x"] and c == 4:
            for kk in range(4):
                a.e("v_add_u32 v%d, 0x10000, v%d" % (vXA + kk, vXA + kk))
        for kk in range(4):
            if st["x"]:
                off = XS(c) - (65536 if c >= 4 else 0)
                a.ds("ds_read_b128 %s, v%d offset:%d" % (vr(XR + 4 * (4 * c + kk), 4), vXA + kk, off), ("r", g, kk))
            for mi, (mat, slot) in enumerate(st["w"]):
                reg, off = self.waddr(slot)
                for t in range(2):
                    a.ds("ds_read_b64_tr_b16 %s, v%d offset:%d" % (vr(buf + mi * 16 + 4 * kk + 2 * t, 2), reg, off + (16 * kk + 4 * t) * 128), ("r", g, kk))

    def step_mfma(self, st, kks):
        a = self.a
        g = st["g"]; c = st["c"]
        buf = WB + (g % 2) * 16 * st["bufm"]
        for kk in kks:
            a.lg.wait(("r", g, kk))
            for mi in range(len(st["w"])):
                acc = st["acc"][mi]
                xf = vr(XR + 4 * (4 * c + kk), 4); wf = vr(buf + mi * 16 + 4 * kk, 4)
                cin = "0" if (c == 0 and kk == 0) else vr(acc, 16)
                if st["tr"][mi]:
                    a.e("v_mfma_f32_32x32x16_bf16 %s, %s, %s, %s" % (vr(acc, 16), wf, xf, cin))
                else:
                    a.e("v_mfma_f32_32x32x16_bf16 %s, %s, %s, %s" % (vr(acc, 16), xf, wf, cin))

    def run_steps(self, steps, look, hooks):
        a = self.a
        n = len(steps)
        issued = [0]

        def issue_upto(k):
            while issued[0] <= min(k, n - 1):
                self.step_loads(steps[issued[0]])
                issued[0] += 1
        issue_upto(look[0] - 1)
        if "pro" in hooks:
            hooks["pro"]()
        a.vm.wait(("ld", 0))
        self.barrier()
        self.step_reads(steps[0])
        issue_upto(look[0])
        for g in range(n):
            self.step_mfma(steps[g], [0, 1])
            if g + 1 < n:
                a.vm.wait(("ld", g + 1))
                a.lg.wait_all()
                self.barrier()
                self.step_reads(steps[g + 1])
                issue_upto(g + 1 + look[g + 1])
                if ("b", g + 1) in hooks:
                    hooks[("b", g + 1)]()
            self.step_mfma(steps[g], [2, 3])
            if g in hooks:
                hooks[g]()

    def pack(self, acc, dst):
        for i in range(8):
            self.a.e("v_cvt_pk_bf16_f32 v%d, v%d, v%d" % (dst + i, acc + 2 * i, acc + 2 * i + 1))

    def zero_pad_tr(self, dst):
        a = self.a
        a.e("s_mov_b32 exec_lo, 0")
        a.e("v_mov_b32 v%d, 0\nv_mov_b32 v%d, 0" % (dst + 6, dst + 7))
        a.e("s_mov_b32 exec_lo, -1")

    def ones_col(self, dst):
        a = self.a
        a.e("s_mov_b32 exec_lo, 0x10000000\ns_mov_b32 exec_hi, 0x10000000")
        for i in range(8):
            a.e("v_mov_b32 v%d, 0x3f803f80" % (dst + i))
        a.e("s_mov_b64 exec, -1")

    def bcast_hi(self, src, dst, tmp):
        a = self.a
        a.e("v_mov_b32 v%d, v%d\nv_mov_b32 v%d, v%d" % (tmp, src, dst, src))
        a.e("v_permlane32_swap_b32 v%d, v%d" % (tmp, dst))

    def phi(self, acc):
        a = self.a
        a.e("s_mov_b32 s%d, 0x%x\ns_mov_b32 s%d, 0x%x" % (sT1, f2u(LOG2E), sT2, f2u(1e-6)))
        for r in range(0, 16, 4):
            t = [vT1, vT2, vT3, vT4]
            for i in range(4):
                a.e("v_mul_f32 v%d, s%d, v%d" % (t[i], sT1, acc + r + i))
            for i in range(4):
                a.e("v_min_f32 v%d, 0, v%d" % (t[i], t[i]))
            for i in range(4):
                a.e("v_exp_f32 v%d, v%d" % (t[i], t[i]))
            for i in range(4):
                a.e("v_max_f32 v%d, 0, v%d" % (acc + r + i, acc + r + i))
            for i in range(4):
                a.e("v_add_f32 v%d, s%d, v%d" % (t[i], sT2, t[i]))
            for i in range(4):
                a.e("v_add_f32 v%d, v%d, v%d" % (acc + r + i, acc + r + i, t[i]))

    def gate_from(self, acc):
        a = self.a
        self.bcast_hi(acc + 12, vGate, vT1)
        a.e("v_mul_f32 v%d, 0x%x, v%d" % (vGate, f2u(-LOG2E), vGate))
        a.e("v_exp_f32 v%d, v%d" % (vGate, vGate))
        a.e("v_add_f32 v%d, 1.0, v%d" % (vGate, vGate))
        a.e("v_rcp_f32 v%d, v%d" % (vGate, vGate))

    def store2k(self, src, sbase, tag):
        a = self.a
        a.vmem("buffer_store_dwordx4 %s, v%d, %s, s%d offen sc1" % (vr(src, 4), vL16, sr(sWS), sbase), tag)
        a.vmem("buffer_store_dwordx4 %s, v%d, %s, s%d offen offset:1024 sc1" % (vr(src + 4, 4), vL16, sr(sWS), sbase), tag)

    def nonce_issue(self):
        a = self.a
        a.e("v_mov_b32 v%d, 0" % vNZ)
        a.vmem("global_load_dword v%d, v%d, s[20:21] sc1" % (vNV, vNZ), "nonce")

    def nonce_take(self):
        a = self.a
        lab = a.lab("Lnon"); done = a.lab("Lnond")
        a.vm.wait("nonce")
        a.e("s_mov_b32 s%d, 0" % sT5)
        a.e(lab + ":")
        a.e("v_readfirstlane_b32 s%d, v%d" % (sN, vNV))
        a.e("s_add_u32 s%d, s%d, 1" % (sT5, sT5))
        a.e("s_cmp_gt_u32 s%d, %d" % (sT5, SPIN_MAX))
        a.e("s_cbranch_scc1 " + done)
        a.e("s_cmp_lg_u32 s%d, 0" % sN)
        a.e("s_cbranch_scc1 " + done)
        a.e("global_load_dword v%d, v%d, s[20:21] sc1" % (vNV, vNZ))
        a.e("s_waitcnt vmcnt(0)")
        a.e("s_branch " + lab)
        a.e(done + ":")

    def load_gate(self):
        a = self.a
        self.srd(sG, 16, 896)
        a.e("v_lshrrev_b32 v%d, 3, v%d\nv_lshlrev_b32 v%d, 7, v%d" % (vT, vLane, vT, vT))
        a.e("v_and_b32 v%d, 7, v%d\nv_lshl_add_u32 v%d, v%d, 1, v%d" % (vT1, vLane, vT, vT1, vT))
        a.e("s_lshl_b32 s%d, s%d, 4" % (sT0, sW))
        a.vmem("buffer_load_ushort v%d, v%d, %s, s%d offen" % (vGV, vT, sr(sG), sT0), "gate")
        a.e("v_mov_b32 v%d, 0" % vGZ)
        a.e("v_lshlrev_b32 v%d, 7, v%d" % (vGA, vT1))
        a.e("v_and_b32 v%d, 2, v%d\nv_lshlrev_b32 v%d, 5, v%d\nv_xor_b32 v%d, 112, v%d" % (vT1, vT1, vT1, vT1, vT1, vT1))
        a.e("v_add3_u32 v%d, v%d, v%d, s%d" % (vGA, vGA, vT1, sL))

    def p3_ids(self):
        a = self.a
        a.e("s_lshr_b32 s%d, s2, 4" % sT3)
        a.e("s_cmp_eq_u32 s%d, 0\ns_cselect_b32 s%d, 16, 0" % (sTY, sT4))
        a.e("s_add_u32 s%d, s%d, s%d" % (sT3, sT3, sT4))
        a.e("s_mul_i32 s%d, s%d, 37\ns_lshr_b32 s%d, s%d, 8" % (sT1, sT3, sT1, sT1))
        a.e("s_mul_i32 s%d, s%d, 7\ns_sub_u32 s%d, s%d, s%d" % (sT2, sT1, sT4, sT3, sT2))
        a.e("s_and_b32 s%d, s2, 7\ns_lshl_b32 s%d, s%d, 2" % (sT2, sT2, sT2))
        a.e("s_cmp_ge_u32 s%d, 28" % sT3)
        a.e("s_cselect_b32 s%d, 1, 0" % sXo)
        a.e("s_add_u32 s%d, s%d, s%d" % (sT3, sT1, sT2))

    def wo_setup(self):
        a = self.a
        self.p3_ids()
        a.e("s_mov_b32 s%d, s%d\ns_mov_b32 s%d, s%d" % (sX, sT3, sX + 1, sT4))
        self.srd(sWO1, 14, 448 * 896)
        self.srd(sWO2, 8, 448 * 896)
        a.e("v_lshrrev_b32 v%d, 3, v%d\nv_mul_u32_u24 v%d, 896, v%d" % (vT, vLane, vOX, vT))
        a.e("v_and_b32 v%d, 2, v%d\nv_lshlrev_b32 v%d, 1, v%d\nv_and_b32 v%d, 7, v%d\nv_xor_b32 v%d, v%d, v%d" % (vT, vT, vT, vT, vT1, vLane, vT, vT, vT1))
        a.e("v_lshl_add_u32 v%d, v%d, 4, v%d" % (vOX, vT, vOX))
        a.e("s_mul_i32 s%d, s%d, %d\ns_lshl_b32 s%d, s%d, 7\ns_add_u32 s%d, s%d, s%d" % (sWo, sW, 8 * 896, sT0, sX + 1, sWo, sWo, sT0))

    def wo_loads(self, srd, lds, tag):
        for i in range(7):
            self.dma(vOX, srd, sWo, i * 64 * 896, lds + i * 8192, tag)

    def type_a(self):
        a = self.a
        steps = []
        for p, (mat, slots, tr, acc) in enumerate([(1, A_WK, True, ACC0), (2, A_WV, False, ACC1), (0, A_WQ, True, ACC0)]):
            for c in range(7):
                steps.append(dict(g=7 * p + c, c=c, x=(p == 0), w=[(mat, slots[c])], tr=[tr], acc=[acc], gate=(p == 2), bufm=1))

        def own_base(area):
            a.e("s_mul_i32 s%d, s%d, 24576\ns_lshl_b32 s%d, s%d, 11\ns_add_u32 s%d, s%d, s%d" % (sT1, sE, sT2, sRT, sT1, sT1, sT2))
            a.e("s_add_u32 s%d, s%d, %d\nv_add_u32 v%d, s%d, v%d" % (sT1, sT1, area + 16384, vT2, sT1, vL16))

        def tile_off(base):
            a.e("s_lshl_b32 s%d, s%d, 6\ns_add_u32 s%d, s%d, s%d\ns_lshl_b32 s%d, s%d, 11\ns_add_u32 s%d, s%d, %d" % (sT1, sH, sT1, sT1, sGT, sT1, sT1, sT1, sT1, base))

        def flag_off(base, dst):
            a.e("s_lshl_b32 s%d, s%d, 6\ns_add_u32 s%d, s%d, s%d\ns_mul_i32 s%d, s%d, %d\ns_add_u32 s%d, s%d, %d" % (dst, sH, dst, dst, sGT, dst, dst, FS, dst, dst, base))

        def epi_k():
            self.stamp(1)
            self.pack(ACC0, PK)
            self.zero_pad_tr(PK)
            tile_off(WS_K)
            self.store2k(PK, sT1, "stK")
            own_base(KAREA)
            a.ds("ds_write_b128 v%d, %s" % (vT2, vr(PK, 4)), "w")
            a.ds("ds_write_b128 v%d, %s offset:1024" % (vT2, vr(PK + 4, 4)), "w")

        def flag_k():
            a.vm.wait("stK")
            flag_off(FL_K, sT1)
            self.set_flag(sT1)

        def epi_v():
            self.stamp(2)
            self.pack(ACC1, PK)
            self.ones_col(PK)
            tile_off(WS_V)
            self.store2k(PK, sT1, "stV")
            own_base(VAREA)
            a.ds("ds_write_b128 v%d, %s" % (vT2, vr(PK, 4)), "w")
            a.ds("ds_write_b128 v%d, %s offset:1024" % (vT2, vr(PK + 4, 4)), "w")

        def flag_v():
            a.vm.wait("stV")
            flag_off(FL_V, sT1)
            self.set_flag(sT1)

        hooks = {"pro": self.load_gate, ("b", 3): self.nonce_issue, ("b", 6): self.nonce_take, 6: epi_k, ("b", 10): flag_k, 13: epi_v, ("b", 17): flag_v}
        self.run_steps(steps, self.o["LA"], hooks)
        self.stamp(3)
        self.gate_from(ACC0)
        a.e("s_mov_b32 s%d, 0x%x" % (sT1, f2u(LOG2E / math.sqrt(28.0))))
        for r in range(16):
            a.e("v_mul_f32 v%d, s%d, v%d" % (ACC0 + r, sT1, ACC0 + r))
        self.pack(ACC0, PK)
        a.lg.wait_all()
        self.barrier()
        for (fl, wsb, area, nm) in ((FL_K, WS_K, KAREA, "hK"), (FL_V, WS_V, VAREA, "hV")):
            skip = a.lab("Lskip")
            a.e("s_lshl_b32 s%d, s%d, 2\ns_lshl_b32 s%d, s%d, 1\ns_add_u32 s%d, s%d, s%d\ns_sub_u32 s%d, s%d, 8" % (sT1, sRB, sT2, sRT, sT1, sT1, sT2, sT1, sT1))
            a.e("s_lshl_b32 s%d, s%d, 6\ns_add_u32 s%d, s%d, s%d" % (sT2, sH, sT2, sT2, sT1))
            a.e("s_lshl_b32 s%d, s%d, 11\ns_add_u32 s%d, s%d, %d" % (sT3, sT2, sT3, sT3, wsb))
            a.e("s_mul_i32 s%d, s%d, %d\ns_add_u32 s%d, s%d, %d\ns_add_u32 s%d, s%d, %d" % (sP0, sT2, FS, sP0, sP0, fl, sP0 + 1, sP0, FS))
            a.e("s_cmp_lt_i32 s%d, 0" % sT1)
            a.e("s_cselect_b32 s%d, %d, s%d" % (sT3, OOB, sT3))
            a.e("s_cbranch_scc1 " + skip)
            self.poll([sP0, sP0 + 1])
            a.e(skip + ":")
            a.e("s_mul_i32 s%d, s%d, 24576\ns_lshl_b32 s%d, s%d, 12\ns_add_u32 s%d, s%d, s%d" % (sT1, sE, sT2, sRT, sT1, sT1, sT2))
            for i in range(4):
                a.e("s_add_u32 m0, s%d, %d" % (sT1, area + 1024 * i))
                a.e("s_add_u32 s%d, s%d, %d" % (sT0, sT3, 1024 * i))
                a.vmem("buffer_load_dwordx4 v%d, %s, s%d offen sc1 lds" % (vL16, sr(sWS), sT0), nm)
            self.stamp(4 if nm == "hK" else 5)
        self.wo_setup()
        skip = a.lab("Lnowo")
        a.e("s_cmp_eq_u32 s%d, 1\ns_cbranch_scc1 %s" % (sXo, skip))
        self.wo_loads(sWO1, WO1_LDS, None)
        a.e("s_waitcnt vmcnt(7)")
        b2 = a.lab("Lwo2")
        a.e("s_branch " + b2)
        a.e(skip + ":")
        a.e("s_waitcnt vmcnt(0)")
        a.e(b2 + ":")
        a.vm.clear()
        self.barrier()
        self.stamp(6)
        self.attention()
        self.stamp(7)
        a.e("s_lshl_b32 s%d, s%d, 4\ns_add_u32 s%d, s%d, s%d" % (sT4, sGT, sT4, sT4, sH))
        a.e("s_lshl_b32 s%d, s%d, 11\ns_add_u32 s%d, s%d, %d" % (sT1, sT4, sT1, sT1, WS_OA))
        self.store2k(PK2, sT1, "stO")
        a.e("s_mul_i32 s%d, s%d, %d\ns_add_u32 s%d, s%d, %d" % (sT4, sT4, FS, sT4, sT4, FL_OA))
        a.lg.wait_all()
        self.barrier()
        idle = a.lab("Lidle")
        a.e("s_cmp_eq_u32 s%d, 1\ns_cbranch_scc1 %s" % (sXo, idle))
        a.e("s_mov_b32 s%d, s%d" % (sT3, sT4))
        self.wo_loads(sWO2, WO2_LDS, "wo2")
        a.vm.wait("stO")
        self.set_flag(sT3)
        self.stamp(8)
        a.e("s_branch L_p3")
        a.e(idle + ":")
        a.e("s_waitcnt vmcnt(0)")
        self.set_flag(sT4)
        a.e("s_branch L_done")

    def attention(self):
        a = self.a
        C, S0, S1, O = 48, 64, 80, 96
        P = [112, 120]; PF = 128
        KF = [136, 144]; VF = [152, 160]
        vKA, vVA, vM, vMP = 168, 169, 170, 171
        S = [S0, S1]
        sRetry, sDmin = sT3, sT4
        for r in range(16):
            c0 = (r & 3) + 8 * (r >> 2)
            a.e("s_bfm_b32 s%d, %d, 0\ns_bfm_b32 s%d, %d, 0" % (sMASK + 2 * r, c0, sMASK + 2 * r + 1, c0 + 4))
        a.e("s_mul_i32 s%d, s%d, 24576\ns_lshl_b32 s%d, s%d, 11\ns_add_u32 s%d, s%d, s%d" % (sT1, sE, sT2, sRT, sT1, sT1, sT2))
        a.e("v_add_u32 v%d, s%d, v%d\nv_add_u32 v%d, %d, v%d" % (vKA, sT1, vL16, vVA, VAREA, vKA))
        a.e("s_sub_u32 s%d, 8, s%d" % (sDmin, sGT))
        a.e("s_mov_b32 s%d, 0" % sRetry)
        a.e("v_mov_b32 v%d, 0x%x" % (vMP, f2u(-3.0e38)))

        def rdK(d, b):
            for s in range(2):
                a.ds("ds_read_b128 %s, v%d offset:%d" % (vr(KF[b] + 4 * s, 4), vKA, d * 2048 + s * 1024), ("K", d))

        def rdV(d, b):
            for s in range(2):
                a.ds("ds_read_b128 %s, v%d offset:%d" % (vr(VF[b] + 4 * s, 4), vVA, d * 2048 + s * 1024), ("V", d))

        def qk(d, b, dst, cin, s):
            if s == 0:
                a.lg.wait(("K", d))
            a.e("v_mfma_f32_32x32x16_bf16 %s, %s, %s, %s" % (vr(dst, 16), vr(KF[b] + 4 * s, 4), vr(PK + 4 * s, 4), cin if s == 0 else vr(dst, 16)))

        def pv(d, b, p, s, first=False):
            if s == 0:
                a.lg.wait(("V", d))
            a.e("v_mfma_f32_32x32x16_bf16 %s, %s, %s, %s" % (vr(O, 16), vr(VF[b] + 4 * s, 4), vr(p + 4 * s, 4), "0" if (first and s == 0) else vr(O, 16)))

        a.e("L_att_top:")
        rdK(8, 0); rdK(0, 1)
        qk(8, 0, S0, "0", 0); qk(8, 0, S0, "0", 1)
        qk(0, 1, S1, "0", 0); qk(0, 1, S1, "0", 1)
        rdK(7, 0); rdV(8, 0); rdV(0, 1)
        ok = a.lab("Lfok")
        a.e("s_cmp_le_i32 s%d, 0\ns_cbranch_scc1 %s" % (sDmin, ok))
        for r in range(16):
            a.e("v_mov_b32 v%d, 0x%x" % (S1 + r, f2u(-3.0e38)))
        a.e(ok + ":")
        for r in range(16):
            a.e("v_cndmask_b32 v%d, v%d, v%d, s[%d:%d]" % (S0 + r, S0 + r, S1 + r, sMASK + 2 * r, sMASK + 2 * r + 1))
        a.e("v_max3_f32 v%d, v%d, v%d, v%d" % (vM, S0, S0 + 1, vMP))
        for r in range(2, 16, 2):
            a.e("v_max3_f32 v%d, v%d, v%d, v%d" % (vM, S0 + r, S0 + r + 1, vM))
        a.e("v_mov_b32 v%d, v%d" % (vT1, vM))
        a.e("v_permlane32_swap_b32 v%d, v%d" % (vT1, vM))
        a.e("v_max_f32 v%d, v%d, v%d" % (vM, vM, vT1))
        for r in range(16):
            a.e("v_sub_f32 v%d, 0, v%d" % (C + r, vM))

        def kill_c(d):
            lab = a.lab("Lc")
            a.e("s_cmp_eq_u32 s%d, %d\ns_cbranch_scc0 %s" % (sDmin, d + 1, lab))
            for r in range(16):
                a.e("v_mov_b32 v%d, 0x%x" % (C + r, f2u(-3.0e38)))
            a.e(lab + ":")

        kill_c(7)
        qk(7, 0, S1, vr(C, 16), 0); qk(7, 0, S1, vr(C, 16), 1)
        rdK(6, 1)
        for r in range(16):
            a.e("v_sub_f32 v%d, v%d, v%d" % (S0 + r, S0 + r, vM))
        for r in range(16):
            a.e("v_exp_f32 v%d, v%d" % (S0 + r, S0 + r))
        self.pack(S0, P[0])
        for r in range(16):
            a.e("v_cndmask_b32 v%d, 0, v%d, s[%d:%d]" % (S0 + r, S0 + r, sMASK + 2 * r, sMASK + 2 * r + 1))
        self.pack(S0, PF)
        for i in range(8):
            a.e("v_xor_b32 v%d, v%d, v%d" % (P[0] + i, P[0] + i, PF + i))
        pv(8, 0, P[0], 0, True); pv(8, 0, P[0], 1)
        pv(0, 1, PF, 0); pv(0, 1, PF, 1)
        rdV(7, 0)
        for d in range(7, 0, -1):
            cur = S[(8 - d) & 1]; nxt = S[(9 - d) & 1]
            pb = P[(8 - d) & 1]
            if d > 1:
                kill_c(d - 1)
                qk(d - 1, (8 - d) & 1, nxt, vr(C, 16), 0)
            for r in range(0, 4):
                a.e("v_exp_f32 v%d, v%d" % (cur + r, cur + r))
            if d > 1:
                qk(d - 1, (8 - d) & 1, nxt, vr(C, 16), 1)
            if d > 2:
                rdK(d - 2, (7 - d) & 1)
            if d > 1:
                rdV(d - 1, (8 - d) & 1)
            for r in range(4, 8):
                a.e("v_exp_f32 v%d, v%d" % (cur + r, cur + r))
            for i in range(4):
                a.e("v_cvt_pk_bf16_f32 v%d, v%d, v%d" % (pb + i, cur + 2 * i, cur + 2 * i + 1))
            for r in range(8, 12):
                a.e("v_exp_f32 v%d, v%d" % (cur + r, cur + r))
            pv(d, (7 - d) & 1, pb, 0)
            for r in range(12, 16):
                a.e("v_exp_f32 v%d, v%d" % (cur + r, cur + r))
            for i in range(4, 8):
                a.e("v_cvt_pk_bf16_f32 v%d, v%d, v%d" % (pb + i, cur + 2 * i, cur + 2 * i + 1))
            pv(d, (7 - d) & 1, pb, 1)
        self.bcast_hi(O + 12, vT2, vT1)
        a.e("v_mov_b32 v%d, 0x%x" % (vT1, f2u(2.0 ** 60)))
        a.e("v_cmp_nlt_f32 vcc, v%d, v%d" % (vT2, vT1))
        a.e("s_cmp_eq_u64 vcc, 0\ns_cbranch_scc1 L_att_ok")
        a.e("s_cmp_eq_u32 s%d, 1\ns_cbranch_scc1 L_att_ok" % sRetry)
        a.e("s_mov_b32 s%d, 1" % sRetry)
        a.e("s_mov_b32 s%d, 7" % sT1)
        a.e("v_add_u32 v%d, %d, v%d" % (vT3, 7 * 2048, vKA))
        a.e("L_att_fb:")
        a.e("s_cmp_lt_i32 s%d, s%d\ns_cbranch_scc1 L_att_top" % (sT1, sDmin))
        a.e("ds_read_b128 %s, v%d\nds_read_b128 %s, v%d offset:1024\ns_waitcnt lgkmcnt(0)" % (vr(KF[0], 4), vT3, vr(KF[0] + 4, 4), vT3))
        a.e("v_mfma_f32_32x32x16_bf16 %s, %s, %s, 0" % (vr(S0, 16), vr(KF[0], 4), vr(PK, 4)))
        a.e("v_mfma_f32_32x32x16_bf16 %s, %s, %s, %s" % (vr(S0, 16), vr(KF[0] + 4, 4), vr(PK + 4, 4), vr(S0, 16)))
        for r in range(0, 16, 2):
            a.e("v_max3_f32 v%d, v%d, v%d, v%d" % (vMP, S0 + r, S0 + r + 1, vMP))
        a.e("v_subrev_u32 v%d, 2048, v%d" % (vT3, vT3))
        a.e("s_sub_u32 s%d, s%d, 1\ns_cmp_ge_i32 s%d, 1\ns_cbranch_scc1 L_att_fb" % (sT1, sT1, sT1))
        a.e("s_branch L_att_top")
        a.e("L_att_ok:")
        a.e("v_rcp_f32 v%d, v%d" % (vT2, vT2))
        a.e("v_mul_f32 v%d, v%d, v%d" % (vT2, vT2, vGate))
        for r in range(16):
            a.e("v_mul_f32 v%d, v%d, v%d" % (O + r, O + r, vT2))
        self.pack(O, PK2)
        self.zero_pad_tr(PK2)

    def type_b(self):
        a = self.a
        steps = []
        for c in range(7):
            steps.append(dict(g=c, c=c, x=True, w=[(1, B_WK[c]), (2, B_WV[c])], tr=[False, False], acc=[ACC0, ACC1], gate=False, bufm=2))
        QA = 224
        for c in range(7):
            steps.append(dict(g=7 + c, c=c, x=False, w=[(0, B_WQ[c])], tr=[True], acc=[QA], gate=True, bufm=2))
        vSA = 245

        def epi_kv():
            self.stamp(1)
            self.phi(ACC0)
            for i in range(8):
                a.e("v_cvt_pk_bf16_f32 v%d, v%d, v%d" % (ACC0 + i, ACC0 + 2 * i, ACC0 + 2 * i + 1))
            self.pack(ACC1, ACC0 + 8)
            self.ones_col(ACC0 + 8)
            a.e("v_mfma_f32_32x32x16_bf16 %s, %s, %s, 0" % (vr(ACC1, 16), vr(ACC0, 4), vr(ACC0 + 8, 4)))
            a.e("v_mfma_f32_32x32x16_bf16 %s, %s, %s, %s" % (vr(ACC1, 16), vr(ACC0 + 4, 4), vr(ACC0 + 12, 4), vr(ACC1, 16)))
            a.e("s_lshl_b32 s%d, s%d, 12\ns_add_u32 s%d, s%d, %d\nv_add_u32 v%d, s%d, v%d" % (sT1, sW, sT1, sT1, B_KVS, vSA, sT1, vL16))
            for q in range(4):
                a.ds("ds_write_b128 v%d, %s offset:%d" % (vSA, vr(ACC1 + 4 * q, 4), 1024 * q), "w")

        def red_kv():
            a.e("s_lshl_b32 s%d, s%d, 14\ns_lshl_b32 s%d, s%d, 10\ns_add_u32 s%d, s%d, s%d\ns_add_u32 s%d, s%d, %d" % (sT1, sE, sT2, sRT, sT1, sT1, sT2, sT1, sT1, B_KVS))
            a.e("v_add_u32 v%d, s%d, v%d" % (vSA, sT1, vL16))
            for j in range(4):
                a.ds("ds_read_b128 %s, v%d offset:%d" % (vr(ACC0 + 4 * j, 4), vSA, 4096 * j), "kvr")
            a.lg.wait("kvr")
            for i in range(4):
                a.e("v_add_f32 v%d, v%d, v%d\nv_add_f32 v%d, v%d, v%d\nv_add_f32 v%d, v%d, v%d" % (
                    ACC0 + i, ACC0 + i, ACC0 + 4 + i, ACC0 + 8 + i, ACC0 + 8 + i, ACC0 + 12 + i, ACC0 + i, ACC0 + i, ACC0 + 8 + i))
            a.e("v_cvt_pk_bf16_f32 v%d, v%d, v%d\nv_cvt_pk_bf16_f32 v%d, v%d, v%d" % (ACC0 + 4, ACC0, ACC0 + 1, ACC0 + 5, ACC0 + 2, ACC0 + 3))
            a.e("s_lshl_b32 s%d, s%d, 4\ns_add_u32 s%d, s%d, s%d\ns_lshl_b32 s%d, s%d, 2\ns_add_u32 s%d, s%d, s%d" % (sT1, sH, sT1, sT1, sRB, sT1, sT1, sT1, sT1, sRT))
            a.e("s_lshl_b32 s%d, s%d, 9\ns_add_u32 s%d, s%d, %d" % (sT1, sT1, sT1, sT1, WS_KVP))
            a.e("v_lshlrev_b32 v%d, 3, v%d" % (vSA, vLane))
            a.vmem("buffer_store_dwordx2 %s, v%d, %s, s%d offen sc1" % (vr(ACC0 + 4, 2), vSA, sr(sWS), sT1), "stP")

        def flag_p():
            a.vm.wait("stP")
            a.e("s_lshl_b32 s%d, s%d, 2\ns_add_u32 s%d, s%d, s%d\ns_lshl_b32 s%d, s%d, 4\ns_add_u32 s%d, s%d, s%d" % (sT1, sH, sT1, sT1, sRT, sT1, sT1, sT1, sT1, sRB))
            a.e("s_mul_i32 s%d, s%d, %d\ns_add_u32 s%d, s%d, %d" % (sT1, sT1, FS, sT1, sT1, FL_P))
            self.set_flag(sT1)

        hooks = {"pro": self.load_gate, ("b", 3): self.nonce_issue, ("b", 6): self.nonce_take, 6: epi_kv, ("b", 8): red_kv, ("b", 11): flag_p}
        self.run_steps(steps, self.o["LB"], hooks)
        self.stamp(3)
        self.gate_from(QA)
        self.phi(QA)
        self.pack(QA, ACC1)
        self.zero_pad_tr(ACC1)
        a.lg.wait_all()
        self.barrier()
        self.wo_setup()
        self.wo_loads(sWO1, WO1_LDS, "wo1")
        a.e("s_lshl_b32 s%d, s%d, 2\ns_add_u32 s%d, s%d, s%d\ns_lshl_b32 s%d, s%d, 4" % (sT1, sH, sT1, sT1, sRT, sT1, sT1))
        a.e("s_mul_i32 s%d, s%d, %d\ns_add_u32 s%d, s%d, %d" % (sP0, sT1, FS, sP0, sP0, FL_P))
        for i in range(1, 16):
            a.e("s_add_u32 s%d, s%d, %d" % (sP0 + i, sP0, i * FS))
        self.poll([sP0 + i for i in range(16)])
        self.stamp(4)
        a.e("s_lshl_b32 s%d, s%d, 15\ns_lshl_b32 s%d, s%d, 9\ns_add_u32 s%d, s%d, s%d\ns_add_u32 s%d, s%d, %d" % (sT1, sH, sT2, sRT, sT1, sT1, sT2, sT1, sT1, WS_KVP))
        a.e("v_lshlrev_b32 v%d, 3, v%d" % (vSA, vLane))
        G = 48
        for i in range(16):
            if i % 2 == 0 and i:
                a.e("s_add_u32 s%d, s%d, 4096" % (sT1, sT1))
            a.vmem("buffer_load_dwordx2 %s, v%d, %s, s%d offen offset:%d sc1" % (vr(G + 2 * i, 2), vSA, sr(sWS), sT1, 2048 * (i % 2)), ("g", i))
        self.wo_loads(sWO2, WO2_LDS, "wo2")
        for i in range(16):
            a.vm.wait(("g", i)) if i in (3, 7, 11, 15) else None
            if i in (3, 7, 11, 15):
                for k in range(i - 3, i + 1):
                    for j in range(2):
                        lo, hi = ACC0 + 2 * j, ACC0 + 2 * j + 1
                        if k == 0:
                            a.e("v_lshlrev_b32 v%d, 16, v%d\nv_and_b32 v%d, 0xffff0000, v%d" % (lo, G + j, hi, G + j))
                        else:
                            a.e("v_lshlrev_b32 v%d, 16, v%d\nv_and_b32 v%d, 0xffff0000, v%d" % (vT1, G + 2 * k + j, vT2, G + 2 * k + j))
                            a.e("v_add_f32 v%d, v%d, v%d\nv_add_f32 v%d, v%d, v%d" % (lo, lo, vT1, hi, hi, vT2))
        a.e("v_cvt_pk_bf16_f32 v%d, v%d, v%d\nv_cvt_pk_bf16_f32 v%d, v%d, v%d" % (ACC0 + 4, ACC0, ACC0 + 1, ACC0 + 5, ACC0 + 2, ACC0 + 3))
        a.e("s_lshl_b32 s%d, s%d, 11\ns_lshr_b32 s%d, s%d, 1\ns_lshl_b32 s%d, s%d, 10\ns_add_u32 s%d, s%d, s%d" % (sT1, sE, sT2, sRT, sT2, sT2, sT2, sT2, sT1))
        a.e("s_and_b32 s%d, s%d, 1\ns_lshl_b32 s%d, s%d, 3\ns_add_u32 s%d, s%d, s%d\ns_add_u32 s%d, s%d, %d" % (sT3, sRT, sT3, sT3, sT2, sT2, sT3, sT2, sT2, B_EXS))
        a.e("v_add_u32 v%d, s%d, v%d" % (vSA, sT2, vL16))
        a.ds("ds_write_b64 v%d, %s" % (vSA, vr(ACC0 + 4, 2)), "w")
        a.e("s_add_u32 s%d, s%d, %d\nv_add_u32 v%d, s%d, v%d" % (sT1, sT1, B_EXS, vSA, sT1, vL16))
        a.lg.wait_all()
        self.barrier()
        a.ds("ds_read_b128 %s, v%d" % (vr(ACC1 + 8, 4), vSA), "kf")
        a.ds("ds_read_b128 %s, v%d offset:1024" % (vr(ACC1 + 12, 4), vSA), "kf")
        a.lg.wait("kf")
        a.e("v_mfma_f32_32x32x16_bf16 %s, %s, %s, 0" % (vr(ACC0, 16), vr(ACC1 + 8, 4), vr(ACC1, 4)))
        a.e("v_mfma_f32_32x32x16_bf16 %s, %s, %s, %s" % (vr(ACC0, 16), vr(ACC1 + 12, 4), vr(ACC1 + 4, 4), vr(ACC0, 16)))
        a.e("v_sub_f32 v%d, 1.0, v%d" % (vGate, vGate))
        self.bcast_hi(ACC0 + 12, vT2, vT1)
        a.e("v_add_f32 v%d, 0x%x, v%d" % (vT2, f2u(1e-6), vT2))
        a.e("v_rcp_f32 v%d, v%d" % (vT2, vT2))
        a.e("v_mul_f32 v%d, v%d, v%d" % (vT2, vT2, vGate))
        for r in range(16):
            a.e("v_mul_f32 v%d, v%d, v%d" % (ACC0 + r, ACC0 + r, vT2))
        self.pack(ACC0, PK2)
        self.zero_pad_tr(PK2)
        a.e("s_lshl_b32 s%d, s%d, 4\ns_add_u32 s%d, s%d, s%d" % (sT4, sGT, sT4, sT4, sH))
        a.e("s_lshl_b32 s%d, s%d, 11\ns_add_u32 s%d, s%d, %d" % (sT1, sT4, sT1, sT1, WS_OB))
        self.store2k(PK2, sT1, "stO")
        a.e("s_mul_i32 s%d, s%d, %d\ns_add_u32 s%d, s%d, %d" % (sT4, sT4, FS, sT4, sT4, FL_OB))
        self.stamp(7)
        a.vm.wait("stO")
        self.set_flag(sT4)
        self.stamp(8)

    def p3(self):
        a = self.a
        WF = 64
        OF = 192
        vA = [48, 49, 50, 51]
        sRP, sCG = sX, sX + 1
        sHQ, sPR = sRT, sE
        a.e("L_p3:")
        a.vm.clear(); a.lg.clear()
        a.e("v_bfe_u32 v52, v%d, 4, 1\nv_lshrrev_b32 v53, 5, v%d\nv_bfe_u32 v54, v%d, 2, 2\nv_and_b32 v55, 3, v%d" % (vLane, vLane, vLane, vLane))
        a.e("v_lshl_add_u32 v56, v53, 2, v54")
        a.e("s_mul_i32 s%d, s%d, %d" % (sT1, sHQ, 112 * 128))
        a.e("v_lshl_add_u32 v56, v56, 7, s%d" % sT1)
        a.e("v_and_b32 v57, 2, v54\nv_lshlrev_b32 v57, 5, v57")
        for ct in range(2):
            a.e("v_add_u32 v58, %d, v52\nv_xor_b32 v58, s%d, v58\nv_lshlrev_b32 v58, 5, v58" % (2 * ct, sHQ))
            a.e("v_lshl_add_u32 v58, v55, 3, v58\nv_xor_b32 v58, v58, v57")
            a.e("v_add_u32 v%d, v56, v58" % vA[ct])
            a.e("v_add_u32 v%d, %d, v%d" % (vA[ct], WO1_LDS, vA[ct]))
            a.e("v_lshlrev_b32 v58, 9, v53\nv_sub_u32 v%d, v%d, v58" % (vA[2 + ct], vA[ct]))
        a.e("s_waitcnt vmcnt(0)")
        self.barrier()
        self.stamp(9)
        for br in range(2):
            if br == 1:
                for i in range(4):
                    a.e("v_subrev_u32 v%d, %d, v%d" % (vA[i], WO1_LDS - WO2_LDS, vA[i]))
            for hh in range(4):
                for s in range(2):
                    for ct in range(2):
                        d = WF + 4 * (((br * 4 + hh) * 2 + s) * 2 + ct)
                        for t in range(2):
                            reg = vA[ct + (2 if (s == 1 and t == 1) else 0)]
                            a.ds("ds_read_b64_tr_b16 %s, v%d offset:%d" % (vr(d + 2 * t, 2), reg, (28 * hh + 16 * s + 8 * t) * 128), "wf")
        a.e("s_lshl_b32 s%d, s%d, 1\ns_add_u32 s%d, s%d, s%d" % (sGT, sRP, sGT, sGT, sPR))
        a.e("s_lshl_b32 s%d, s%d, 4\ns_lshl_b32 s%d, s%d, 2\ns_add_u32 s%d, s%d, s%d" % (sT4, sGT, sT1, sHQ, sT4, sT4, sT1))
        for br, (fl, wsb) in enumerate(((FL_OB, WS_OB), (FL_OA, WS_OA))):
            a.e("s_mul_i32 s%d, s%d, %d\ns_add_u32 s%d, s%d, %d" % (sP0, sT4, FS, sP0, sP0, fl))
            for i in range(1, 4):
                a.e("s_add_u32 s%d, s%d, %d" % (sP0 + i, sP0, i * FS))
            self.poll([sP0 + i for i in range(4)])
            self.stamp(10 + 2 * br)
            a.e("s_lshl_b32 s%d, s%d, 11\ns_add_u32 s%d, s%d, %d\ns_add_u32 s%d, s%d, 4096" % (sT1, sT4, sT1, sT1, wsb, sT2, sT1))
            ob = OF
            for i in range(8):
                a.vmem("buffer_load_dwordx4 %s, v%d, %s, s%d offen offset:%d sc1" % (vr(ob + 4 * i, 4), vL16, sr(sWS), sT1 if i < 4 else sT2, 1024 * (i % 4)), ("o", br, i))
            for i in range(8):
                a.vm.wait(("o", br, i))
                for ct in range(2):
                    d = WF + 4 * ((br * 8 + i) * 2 + ct)
                    acc = ACC0 + 16 * ct
                    a.e("v_mfma_f32_32x32x16_bf16 %s, %s, %s, %s" % (vr(acc, 16), vr(d, 4), vr(ob + 4 * i, 4), "0" if (br == 0 and i == 0) else vr(acc, 16)))
            self.stamp(11 + 2 * br)
        a.e("s_mul_i32 s%d, s%d, 24576\ns_add_u32 s%d, s%d, %d" % (sT1, sPR, sT1, sT1, RED))
        for b in range(1, 4):
            a.e("s_xor_b32 s%d, s%d, %d\ns_mul_i32 s%d, s%d, 6144\ns_add_u32 s%d, s%d, s%d" % (sT2, sHQ, b, sT2, sT2, sT2, sT2, sT1))
            a.e("v_add_u32 v%d, s%d, v%d" % (48 + b, sT2, vL16))
        a.e("s_mul_i32 s%d, s%d, 6144\ns_add_u32 s%d, s%d, s%d\nv_add_u32 v48, s%d, v%d" % (sT2, sHQ, sT2, sT2, sT1, sT2, vL16))
        self.srd(sOUT, 18, 2048 * 896)
        a.e("v_and_b32 v52, 31, v%d\nv_mul_u32_u24 v52, 896, v52\nv_lshrrev_b32 v53, 5, v%d\nv_lshl_add_u32 v52, v53, 4, v52" % (vLane, vLane))
        a.e("s_mul_i32 s%d, s%d, %d\ns_lshl_b32 s%d, s%d, 7\ns_add_u32 s%d, s%d, s%d\ns_lshl_b32 s%d, s%d, 5\ns_add_u32 s%d, s%d, s%d" % (
            sT3, sGT, 32 * 896, sT2, sCG, sT3, sT3, sT2, sT2, sHQ, sT3, sT3, sT2))
        for b in range(1, 4):
            for g in range(2):
                a.ds("ds_write_b128 v%d, %s offset:%d" % (48 + b, vr(ACC0 + 8 * b + 4 * g, 4), (b - 1) * 2048 + g * 1024), "w")
        a.lg.wait_all()
        self.barrier()
        for k in range(6):
            a.ds("ds_read_b128 %s, v48 offset:%d" % (vr(64 + 4 * k, 4), k * 1024), ("rd", k))
        for k in range(6):
            a.lg.wait(("rd", k))
            for i in range(4):
                a.e("v_add_f32 v%d, v%d, v%d" % (ACC0 + 4 * (k & 1) + i, ACC0 + 4 * (k & 1) + i, 64 + 4 * k + i))
        for i in range(4):
            a.e("v_cvt_pk_bf16_f32 v%d, v%d, v%d" % (60 + i, ACC0 + 2 * i, ACC0 + 2 * i + 1))
        a.e("v_permlane32_swap_b32 v60, v62\nv_permlane32_swap_b32 v61, v63")
        a.vmem("buffer_store_dwordx4 v[60:63], v52, %s, s%d offen" % (sr(sOUT), sT3))
        self.stamp(14)

    def build(self):
        a = self.a
        a.e("; @launch grid=(256,1,1) block=(512,1,1) lds=163840")
        a.e('.amdgcn_target "amdgcn-amd-amdhsa--gfx950"')
        a.e(".text\n.globl %s\n.p2align 8\n.type %s,@function\n%s:" % (NAME, NAME, NAME))
        if self.prof:
            a.e("s_memtime s[98:99]")
        a.e("s_cmp_ge_u32 s2, 256\ns_cbranch_scc1 L_end")
        a.e("s_load_dwordx16 s[4:19], s[0:1], 0\ns_load_dwordx4 s[20:23], s[0:1], 64")
        a.e("v_lshrrev_b32 v%d, 6, v0\nv_and_b32 v%d, 63, v0" % (vT, vLane))
        a.e("v_readfirstlane_b32 s%d, v%d" % (sW, vT))
        a.e("v_lshlrev_b32 v%d, 4, v%d" % (vL16, vLane))
        a.e("s_and_b32 s%d, s2, 3\ns_lshl_b32 s%d, s%d, 2\ns_lshr_b32 s%d, s2, 6\ns_add_u32 s%d, s%d, s%d" % (sT1, sT1, sT1, sRB, sRB, sRB, sT1))
        a.e("s_bfe_u32 s%d, s2, 0x10002\ns_lshl_b32 s%d, s%d, 2\ns_bfe_u32 s%d, s2, 0x20004\ns_add_u32 s%d, s%d, s%d" % (sT1, sT1, sT1, sHP, sHP, sHP, sT1))
        a.e("s_bfe_u32 s%d, s2, 0x10003" % sTY)
        a.e("s_and_b32 s%d, s%d, 3\ns_lshr_b32 s%d, s%d, 2\ns_lshl_b32 s%d, s%d, 10" % (sRT, sW, sE, sW, sL, sW))
        a.e("s_lshl_b32 s%d, s%d, 1\ns_add_u32 s%d, s%d, s%d" % (sH, sHP, sH, sH, sE))
        a.e("s_lshl_b32 s%d, s%d, 2\ns_add_u32 s%d, s%d, s%d" % (sGT, sRB, sGT, sGT, sRT))
        a.e("s_lshl_b32 s%d, s%d, 4\ns_add_u32 s%d, s%d, s%d\ns_mul_i32 s%d, s%d, %d" % (sXo, sRB, sXo, sXo, sW, sXo, sXo, 8 * 896))
        a.e("s_mul_i32 s%d, s%d, %d\ns_mul_i32 s%d, s%d, 112\ns_add_u32 s%d, s%d, s%d" % (sWo, sW, 8 * 2688, sT1, sHP, sWo, sWo, sT1))
        a.e("v_lshrrev_b32 v5, 3, v%d\nv_and_b32 v6, 7, v%d" % (vLane, vLane))
        a.e("s_and_b32 s%d, s%d, 1\ns_lshl_b32 s%d, s%d, 2" % (sT1, sW, sT1, sT1))
        a.e("v_lshrrev_b32 v7, 1, v5\nv_add_u32 v7, s%d, v7\nv_xor_b32 v7, v7, v6" % sT1)
        a.e("v_mul_u32_u24 v%d, 896, v5\nv_lshl_add_u32 v%d, v7, 4, v%d" % (vOX, vOX, vOX))
        a.e("v_and_b32 v7, 2, v5\nv_lshlrev_b32 v7, 1, v7\nv_xor_b32 v7, v7, v6")
        a.e("v_mul_u32_u24 v%d, 2688, v5\nv_lshl_add_u32 v%d, v7, 4, v%d" % (vOW, vOW, vOW))
        a.e("v_and_b32 v9, 31, v%d\nv_lshrrev_b32 v10, 5, v%d\nv_bfe_u32 v11, v%d, 1, 3" % (vLane, vLane, vLane))
        a.e("s_lshl_b32 s%d, s%d, 12" % (sT1, sRT))
        a.e("v_lshl_add_u32 v9, v9, 7, s%d" % sT1)
        for kk in range(4):
            a.e("v_add_u32 v%d, %d, v10\nv_xor_b32 v%d, v%d, v11\nv_lshl_add_u32 v%d, v%d, 4, v9" % (vT, 2 * kk, vT, vT, vXA + kk, vT))
        a.e("v_bfe_u32 v%d, v%d, 4, 1\nv_and_b32 v%d, 3, v%d" % (vT1, vLane, vT2, vLane))
        a.e("v_lshlrev_b32 v%d, 5, v%d\nv_lshl_add_u32 v%d, v%d, 3, v%d" % (vT1, vT1, vT1, vT2, vT1))
        a.e("s_mul_i32 s%d, s%d, 56" % (sT1, sE))
        a.e("v_cmp_eq_u32 s[%d:%d], 56, v%d" % (sT2 + 0, sT2 + 1, vT1))
        a.e("v_add_u32 v%d, s%d, v%d\nv_mov_b32 v%d, 112" % (vT1, sT1, vT1, vT2))
        a.e("v_cndmask_b32 v%d, v%d, v%d, s[%d:%d]" % (vT1, vT1, vT2, sT2, sT2 + 1))
        a.e("v_bfe_u32 v%d, v%d, 2, 2\nv_and_b32 v%d, 2, v%d\nv_lshlrev_b32 v%d, 5, v%d\nv_xor_b32 v%d, v%d, v%d" % (vT2, vLane, vT3, vT2, vT3, vT3, vT1, vT1, vT3))
        a.e("v_lshl_add_u32 v%d, v10, 3, v%d\nv_lshl_add_u32 v%d, v%d, 7, v%d" % (vT2, vT2, vWA, vT2, vT1))
        a.e("v_add_u32 v%d, 0x10000, v%d\nv_add_u32 v%d, 0x20000, v%d" % (vWA + 1, vWA, vWA + 2, vWA))
        a.e("s_waitcnt lgkmcnt(0)")
        if self.prof:
            a.e("s_mov_b32 s3, s98\nv_mov_b32 v255, 0")
        self.srd(sX, 4, 2048 * 896)
        a.e("s_cmp_eq_u32 s%d, 0\ns_cselect_b32 s%d, s6, s12\ns_cselect_b32 s%d, s7, s13\ns_mov_b32 s%d, %d\ns_mov_b32 s%d, 0x20000" % (sTY, sWm, sWm + 1, sWm + 2, 448 * 2688, sWm + 3))
        self.srd(sWS, 22, WS_SIZE if not self.prof else (16 << 20))
        nn = a.lab("Lnn")
        a.e("s_or_b32 s%d, s2, s%d\ns_cmp_lg_u32 s%d, 0\ns_cbranch_scc1 %s" % (sT1, sW, sT1, nn))
        a.e("s_memrealtime s[%d:%d]\ns_waitcnt lgkmcnt(0)\ns_or_b32 s%d, s%d, 1" % (sT2, sT2 + 1, sT2, sT2))
        a.e("v_mov_b32 v%d, s%d\nv_mov_b32 v%d, 0" % (vT1, sT2, vT2))
        a.e("s_mov_b64 exec, 1\nglobal_store_dword v%d, v%d, s[20:21] sc1\ns_mov_b64 exec, -1" % (vT2, vT1))
        a.e(nn + ":")
        a.e("s_cmp_eq_u32 s%d, 0\ns_cbranch_scc0 L_typeB" % sTY)
        a.vm.clear(); a.lg.clear()
        self.type_a()
        a.e("L_typeB:")
        a.vm.clear(); a.lg.clear()
        self.type_b()
        self.p3()
        a.e("L_done:")
        if self.prof:
            a.e("s_lshl_b32 s%d, s2, 3\ns_add_u32 s%d, s%d, s%d\ns_lshl_b32 s%d, s%d, 8\ns_add_u32 s%d, s%d, %d" % (sT1, sT1, sT1, sW, sT1, sT1, sT1, sT1, WS_PROF))
            a.e("s_waitcnt vmcnt(0)")
            self.stamp(15)
            a.e("s_memrealtime s[100:101]\ns_waitcnt lgkmcnt(0)\nv_writelane_b32 v255, s100, 16")
            a.e("v_lshlrev_b32 v%d, 2, v%d" % (vT, vLane))
            a.e("buffer_store_dword v255, v%d, %s, s%d offen" % (vT, sr(sWS), sT1))
        a.e("L_end:\ns_endpgm")
        a.e('.section .rodata,"a"\n.p2align 6\n.amdhsa_kernel %s' % NAME)
        a.e("  .amdhsa_next_free_vgpr 256\n  .amdhsa_next_free_sgpr 102\n  .amdhsa_accum_offset 256\n  .amdhsa_group_segment_fixed_size 0\n  .amdhsa_kernarg_size 80\n  .amdhsa_user_sgpr_count 2\n  .amdhsa_user_sgpr_kernarg_segment_ptr 1\n  .amdhsa_system_sgpr_workgroup_id_x 1\n.end_amdhsa_kernel")
        text, n = a.finish()
        return text


if __name__ == "__main__":
    prof = "prof" in sys.argv[2:]
    open(sys.argv[1], "w").write(Gen(prof=prof).build())
```

```python
import re

_VR = re.compile(r"^-?\|?(?:abs\()?v(\d+)\)?\|?$")
_VRR = re.compile(r"^v\[(\d+):(\d+)\]$")
_SR = re.compile(r"^s(\d+)$")
_SRR = re.compile(r"^s\[(\d+):(\d+)\]$")

TRANS = ("v_exp_f32", "v_log_f32", "v_rcp_f32", "v_rsq_f32", "v_sqrt_f32", "v_sin_f32", "v_cos_f32", "v_exp_f16", "v_rcp_iflag_f32")


def vregs(tok):
    m = _VR.match(tok)
    if m:
        return {int(m.group(1))}
    m = _VRR.match(tok)
    if m:
        return set(range(int(m.group(1)), int(m.group(2)) + 1))
    return set()


def sregs(tok):
    m = _SR.match(tok)
    if m:
        return {int(m.group(1))}
    m = _SRR.match(tok)
    if m:
        return set(range(int(m.group(1)), int(m.group(2)) + 1))
    if tok == "vcc":
        return {"vcc"}
    if tok == "exec":
        return {"exec"}
    if tok == "m0":
        return {"m0"}
    return set()


class Ins:
    def __init__(self, text):
        self.text = text
        t = text.split(";")[0].strip()
        self.label = None
        self.op = None
        self.ops = []
        if not t:
            return
        if t.endswith(":"):
            self.label = t[:-1]
            return
        if t.startswith("."):
            return
        parts = t.split(None, 1)
        self.op = parts[0]
        rest = parts[1] if len(parts) > 1 else ""
        toks = [x.strip() for x in rest.split(",")]
        ops = []
        self.mods = []
        for i, x in enumerate(toks):
            sp = x.split()
            if not sp:
                continue
            ops.append(sp[0])
            self.mods += sp[1:]
        self.ops = ops
        self.classify()

    def classify(self):
        op = self.op
        o = self.ops
        self.vw = set(); self.vr = set(); self.sw = set(); self.sr = set()
        self.kind = "other"
        self.srcC = set(); self.srcAB = set()
        base = re.sub(r"_(e32|e64|sdwa|dpp)$", "", op)
        self.base = base
        if op.startswith("v_mfma"):
            self.kind = "mfma"
            self.vw = vregs(o[0]); self.srcAB = vregs(o[1]) | vregs(o[2]); self.srcC = vregs(o[3])
            self.vr = self.srcAB | self.srcC
            self.passes = 8 if "32x32" in op else 4
        elif op.startswith("v_"):
            self.kind = "valu"
            if base.startswith("v_cmp"):
                self.sw = sregs(o[0])
                for x in o[1:]:
                    self.vr |= vregs(x); self.sr |= sregs(x)
            elif base in ("v_readfirstlane_b32", "v_readlane_b32"):
                self.sw = sregs(o[0]); self.vr = vregs(o[1])
                for x in o[2:]:
                    self.sr |= sregs(x)
            elif base.startswith("v_permlane"):
                self.vw = vregs(o[0]) | vregs(o[1]); self.vr = set(self.vw)
            else:
                self.vw = vregs(o[0])
                rest = o[1:]
                if base in ("v_add_co_u32", "v_addc_co_u32", "v_sub_co_u32", "v_subb_co_u32"):
                    self.sw = sregs(o[1]); rest = o[2:]
                for x in rest:
                    self.vr |= vregs(x); self.sr |= sregs(x)
                if base in ("v_fmac_f32", "v_dot2c_f32_bf16", "v_writelane_b32") or "UNUSED_PRESERVE" in " ".join(self.mods):
                    self.vr |= self.vw
            self.trans = base in TRANS
            self.dpp = any(m.startswith(("row_", "quad_perm", "wave_", "bank_mask", "row_mask")) for m in self.mods)
        elif op.startswith("ds_"):
            self.kind = "ds"
            if op.startswith("ds_read") or op.startswith("ds_bpermute") or op.startswith("ds_swizzle") or "_rtn" in op:
                self.vw = vregs(o[0])
                for x in o[1:]:
                    self.vr |= vregs(x)
            else:
                for x in o:
                    self.vr |= vregs(x)
        elif op.startswith("buffer_") or op.startswith("global_"):
            self.kind = "vmem"
            lds = "lds" in self.mods or "_lds_" in op
            self.lds = lds
            self.store = "store" in op or "atomic" in op
            self.wide = op.endswith("x4") or op.endswith("x3")
            self.data = set()
            if op.startswith("buffer_"):
                if lds or op in ("buffer_wbl2", "buffer_inv"):
                    for x in o:
                        self.vr |= vregs(x); self.sr |= sregs(x)
                elif self.store:
                    self.data = vregs(o[0])
                    for x in o:
                        self.vr |= vregs(x); self.sr |= sregs(x)
                else:
                    self.vw = vregs(o[0])
                    for x in o[1:]:
                        self.vr |= vregs(x); self.sr |= sregs(x)
            else:
                if lds:
                    for x in o:
                        self.vr |= vregs(x); self.sr |= sregs(x)
                elif self.store:
                    self.data = vregs(o[1])
                    for x in o:
                        self.vr |= vregs(x); self.sr |= sregs(x)
                else:
                    self.vw = vregs(o[0])
                    for x in o[1:]:
                        self.vr |= vregs(x); self.sr |= sregs(x)
            if lds:
                self.sr |= {"m0"}
        elif op.startswith("s_"):
            self.kind = "salu"
            if op.startswith(("s_cmp", "s_cbranch", "s_branch", "s_waitcnt", "s_barrier", "s_nop", "s_endpgm", "s_sleep", "s_setprio", "s_bitcmp")):
                for x in o:
                    self.sr |= sregs(x)
            else:
                if o:
                    self.sw = sregs(o[0])
                for x in o[1:]:
                    self.sr |= sregs(x)
                if "saveexec" in op:
                    self.sw |= {"exec"}

    def states(self):
        if self.op is None:
            return 0
        if self.op == "s_nop":
            return int(self.ops[0], 0) + 1
        return 1


def need(p, c):
    n = 0
    if p.kind == "valu":
        if p.base.startswith("v_dot") and p.vw & (c.vr | c.vw):
            same_c = c.kind == "valu" and c.base == p.base and not (p.vw & (vregs(c.ops[1]) | vregs(c.ops[2])))
            if not same_c:
                n = max(n, 3)
        if c.kind == "mfma" and p.vw & c.vr:
            n = max(n, 2)
        if c.kind == "valu":
            if p.trans and not c.trans and p.vw & c.vr:
                n = max(n, 1)
            if p.trans and c.trans and p.vw & c.vr:
                n = max(n, 1)
            if c.base.startswith("v_permlane") and p.vw & c.vr:
                n = max(n, 2)
            if c.base in ("v_readfirstlane_b32", "v_readlane_b32") and p.vw & c.vr:
                n = max(n, 1)
            if c.dpp and p.vw & c.vr:
                n = max(n, 2)
            if p.sw & c.sr:
                n = max(n, 4 if c.base in ("v_readlane_b32", "v_writelane_b32") else 2)
            if "vcc" in p.sw and c.base in ("v_cndmask_b32", "v_addc_co_u32", "v_subb_co_u32") and "vcc" in c.sr:
                n = max(n, 2)
        if c.kind == "vmem" and p.sw & c.sr:
            n = max(n, 5)
        if c.kind == "salu" and p.sw & c.sr:
            n = max(n, 1)
    if p.kind == "mfma":
        big = 12 if p.passes == 8 else 8
        if c.kind == "valu" and p.vw & (c.vr | c.vw):
            n = max(n, big)
        if c.kind in ("ds", "vmem") and p.vw & (c.vr | c.vw):
            n = max(n, big)
        if c.kind == "mfma":
            if p.vw & c.srcAB:
                n = max(n, big)
            if p.vw & c.srcC and not (p.vw == c.srcC and p.passes == c.passes):
                n = max(n, 10 if p.passes == 8 else 6)
        if c.kind == "valu" and p.srcC & c.vw:
            n = max(n, 7 if p.passes == 8 else 3)
        if c.kind in ("ds", "vmem") and p.srcC & c.vw:
            n = max(n, 7 if p.passes == 8 else 3)
    if p.kind == "salu":
        if "m0" in p.sw and c.kind == "vmem" and c.lds:
            n = max(n, 1)
        if "exec" in p.sw and c.kind == "valu" and c.dpp:
            n = max(n, 5)
    if p.kind == "vmem" and p.store and p.wide:
        if c.kind == "valu" and p.data & c.vw:
            n = max(n, 2)
        elif c.kind in ("ds", "vmem", "mfma") and p.data & c.vw:
            n = max(n, 2)
    if p.kind == "ds" and p.op in ("ds_write_b128", "ds_write_b96"):
        if c.kind == "valu" and (p.vr & c.vw):
            n = max(n, 2)
    return n


MAXLOOK = 14


def pad_hazards(lines):
    ins = [Ins(l) for l in lines]
    total = 0
    while True:
        labels = {x.label: i for i, x in enumerate(ins) if x.label}
        jumps = {}
        for i, x in enumerate(ins):
            if x.op and (x.op.startswith("s_cbranch") or x.op == "s_branch"):
                jumps.setdefault(labels[x.ops[0]], []).append(i)

        def preds(i):
            r = []
            k = i - 1
            while k >= 0 and ins[k].op is None:
                if ins[k].label is not None:
                    r += jumps.get(k, [])
                k -= 1
            if k >= 0 and ins[k].op not in ("s_branch", "s_endpgm", "s_setpc_b64"):
                r.append(k)
            return r

        out = []
        changed = False
        extra = {}
        for i, c in enumerate(ins):
            if c.op is None or c.op == "s_nop":
                out.append(c)
                continue
            worst = 0
            stack = [(p, 0) for p in preds(i)]
            seen = set()
            while stack:
                j, dist = stack.pop()
                if dist >= MAXLOOK or (j, dist) in seen:
                    continue
                seen.add((j, dist))
                p = ins[j]
                n = need(p, c)
                if n > dist:
                    worst = max(worst, n - dist)
                for q in preds(j):
                    stack.append((q, dist + p.states() + extra.get(j, 0)))
            if worst > 0:
                out.append(Ins("s_nop %d" % (worst - 1)))
                extra[i] = worst
                total += 1
                changed = True
            out.append(c)
        ins = out
        if not changed:
            break
    return [x.text for x in ins], total


class Cnt:
    def __init__(self, asm, name, maxv):
        self.asm = asm; self.name = name; self.maxv = maxv
        self.q = []

    def issue(self, tag=None):
        self.q.append(tag)

    def n_after(self, tag):
        idx = [i for i, t in enumerate(self.q) if t == tag]
        if not idx:
            return None
        return len(self.q) - 1 - idx[-1]

    def wait(self, tag):
        self.asm.do(lambda: self._wait(tag), 1)

    def _wait(self, tag):
        n = self.n_after(tag)
        if n is None:
            return
        n2 = min(n, self.maxv)
        self.asm.raw("s_waitcnt %s(%d)" % (self.name, n2))
        self.q = self.q[len(self.q) - n2:] if n2 else []

    def wait_all(self):
        self.asm.do(self._wait_all, 1)

    def _wait_all(self):
        self.asm.raw("s_waitcnt %s(0)" % self.name)
        self.q = []

    def clear(self):
        self.asm.do(self._clear, 0)

    def _clear(self):
        self.q = []


class Asm:
    def __init__(self):
        self.lines = []
        self.vm = Cnt(self, "vmcnt", 63)
        self.lg = Cnt(self, "lgkmcnt", 15)
        self.uid = 0
        self.rec = None
        self.grp = None

    def raw(self, text):
        for l in text.split("\n"):
            self.lines.append(l)

    def do(self, thunk, cost):
        if self.rec is None:
            thunk()
        elif self.grp is not None:
            self.grp.append((thunk, cost))
        else:
            self.rec.append([(thunk, cost)])

    def e(self, text):
        self.do(lambda: self.raw(text), text.count("\n") + 1)

    def lab(self, prefix="L"):
        self.uid += 1
        return "%s_%d" % (prefix, self.uid)

    def ds(self, text, tag=None):
        def f():
            self.raw(text); self.lg.issue(tag)
        self.do(f, 1)

    def vmem(self, text, tag=None):
        def f():
            self.raw(text); self.vm.issue(tag)
        self.do(f, 4)

    def begin(self):
        if self.rec is not None:
            assert self.grp is None
            self.grp = []

    def end(self):
        if self.rec is not None:
            self.rec.append(self.grp)
            self.grp = None

    def record(self, fn):
        assert self.rec is None
        self.rec = []
        fn()
        r, self.rec = self.rec, None
        return r

    def play(self, units, budget=None):
        assert self.rec is None
        used = 0
        while units and (budget is None or used < budget):
            for thunk, cost in units.pop(0):
                thunk(); used += cost

    def finish(self):
        lines, n = pad_hazards(self.lines)
        return "\n".join(lines) + "\n", n
```

```python
import sys, struct, math
from asmlib import Asm

NAME = "gated_mix__sliding_block__linear_attn_block__prompt_kernel"


def f2u(x):
    return struct.unpack("<I", struct.pack("<f", x))[0]


LOG2E = 1.4426950408889634
NEG = f2u(-3.0e38)
WS_K = 0
WS_V = 2 << 20
WS_OA = 4 << 20
WS_OB = 6 << 20
WS_KVP = 8 << 20
FS = 128
WS_FL = 9 << 20
FL_K = WS_FL
FL_V = FL_K + 1024 * FS
FL_OA = FL_V + 1024 * FS
FL_OB = FL_OA + 1024 * FS
FL_P = FL_OB + 1024 * FS
WS_SIZE = 10 << 20
WS_PROF = 12 << 20
OOB = 0x70000000
SPIN_MAX = 1 << 16

sX, sWm, sWS, sG, sWO1, sWO2, sOUT = 24, 28, 32, 36, 40, 44, 48
sT0, sT1, sT2, sT3 = 52, 53, 54, 55
sW, sRT, sE, sRB, sHP, sTY, sH, sN, sGT = 56, 57, 58, 59, 60, 61, 62, 63, 64
sXo, sWo, sL = 65, 66, 67
sT4, sT5 = 68, 69
sMASK = 70
sKo, sVo, sKf, sVf = 4, 5, 6, 7
sPo, sPf, sPF, sGo = 4, 5, 6, 7
sOo, sFO = 8, 9
sHK, sHV, sHFk, sHFv, sHL, sHok = 10, 11, 12, 13, 14, 15
sOD = [16, 18]
sFA = 20
sFB = 24
sWoP, sIdle = 26, 27
sPD = 28
sOBf, sOut, sGM = 36, 37, 38
sD2 = 59
sUP = 60
sOBd = 65
sL2E, sEPS, sSEL, sONE = 70, 72, 74, 76

vLane, vL16, vOX, vOW = 1, 2, 3, 4
vXA = 5
vWA = 9
vGV, vGZ, vGA, vT = 12, 13, 14, 15
ACC0, ACC1 = 16, 32
WB = 48
vW1, vW2, vRD, vOA = 80, 84, 88, 92
MK, vOwn, vKA, vVA, vS, vS2, vOne = 94, 102, 103, 104, 106, 108, 110
XR = 112
PK = 224
PK2 = 232
vGate = 240
vT1, vT2, vT3, vT4 = 241, 242, 243, 244
vNV, vNZ = 246, 247
vPA, vP1, vP2 = 248, 249, 250
vLG, vPB = 251, 253
vKW, vKR, vL8, vXW, vXR = 245, 250, 251, 252, 253
vF0 = 254
WF = 94
OF = [48, 222]


def XS(c): return 16384 * c
RING = 114688
A_WK = [RING + 8192 * c for c in range(6)] + [RING]
A_WV = [0, 8192, 24576, 32768, RING + 8192, RING + 16384, RING + 24576]
A_WQ = [49152, 57344, 73728, 81920, 98304, 106496, RING + 32768]
KAREA, VAREA = 0, 49152
B_WK = [RING + 16384 * (c % 3) for c in range(7)]
B_WV = [x + 8192 for x in B_WK]
B_WQ = [8192 * c for c in range(7)]
B_KVS = 65536
B_EXS = 65536
WO1_LDS = 106496
WO2_HEAD = 98304
RED = 49152


def wo2_slot(i):
    return WO2_HEAD if i == 0 else (i - 1) * 8192


def vr(b, n):
    return "v[%d:%d]" % (b, b + n - 1)


def sr(b, n=4):
    return "s[%d:%d]" % (b, b + n - 1)


class Gen:
    def __init__(self, prof=False, opts=None):
        self.a = Asm()
        self.prof = prof
        self.o = dict(
            LA=[3, 3, 3, 3, 3, 4, 4] + [4] * 14, LB=[2] * 5 + [3, 4] + [5] * 7,
            barA=[0, 1, 2, 3, 4, 5, 6, 7, 9, 11, 13, 14, 16, 18, 20], barB=[0, 1, 2, 3, 4, 5, 6, 7, 8, 10, 12],
            A_fk=12, A_fv=19, A_pk=17, A_hk=19, A_pv=20, A_ob=2, B_fp=11, B_wo=10, B_pp=13, ahead=3, pre=1, fill=5, fill1=14, spread=0, dmapos=1, LAx=3, LBx=2)
        if opts:
            self.o.update(opts)
        self.vp = 255
        self.out_of_line = []

    def srd(self, d, b, size):
        self.a.e("s_mov_b32 s%d, s%d\ns_mov_b32 s%d, s%d\ns_mov_b32 s%d, %d\ns_mov_b32 s%d, 0x20000" % (d, b, d + 1, b + 1, d + 2, size, d + 3))

    def stamp(self, idx):
        if not self.prof:
            return
        a = self.a
        a.begin()
        a.e("s_memtime vcc")
        a.lg.wait_all()
        a.e("s_sub_u32 vcc_lo, vcc_lo, s3")
        a.e("v_writelane_b32 v%d, vcc_lo, %d" % (self.vp, idx))
        a.end()

    def dma(self, voff, srd, sbase, imm, lds, tag, slds=sL, flags=""):
        a = self.a
        a.begin()
        a.e("s_add_u32 m0, s%d, %d" % (slds, lds))
        a.e("s_add_u32 s%d, s%d, %d" % (sT0, sbase, imm))
        a.vmem("buffer_load_dwordx4 v%d, %s, s%d offen %slds" % (voff, sr(srd), sT0, flags), tag)
        a.end()

    def barrier(self):
        self.a.e("s_barrier")

    def set_flag(self, soff):
        self.a.vmem("buffer_store_dword v%d, v%d, %s, s%d offen sc1" % (vNV, vF0, sr(sWS), soff), "flag")

    def poll4_issue(self, base):
        for i in range(4):
            self.a.e("s_load_dword s%d, s[%d:%d], %d glc" % (sPD + i, base, base + 1, i * FS))

    def poll4_test(self):
        a = self.a
        a.lg.wait_all()
        a.e("s_xor_b32 s%d, s%d, s%d\ns_xor_b32 s%d, s%d, s%d" % (sPD, sPD, sPD + 1, sPD + 2, sPD + 2, sPD + 3))
        a.e("s_xor_b32 s%d, s%d, s%d\ns_xor_b32 s%d, s%d, s%d" % (sPD + 1, sPD + 1, sN, sPD + 3, sPD + 3, sN))
        a.e("s_or_b64 s[%d:%d], s[%d:%d], s[%d:%d]" % (sPD, sPD + 1, sPD, sPD + 1, sPD + 2, sPD + 3))

    def poll4(self, base):
        a = self.a
        lab = a.lab("Lpoll"); done = a.lab("Lpolld")
        a.e("s_mov_b32 s%d, 0" % sT5)
        a.e(lab + ":")
        self.poll4_issue(base)
        a.e("s_add_u32 s%d, s%d, 1" % (sT5, sT5))
        a.e("s_cmp_gt_u32 s%d, %d" % (sT5, SPIN_MAX))
        a.e("s_waitcnt lgkmcnt(0)")
        a.e("s_cbranch_scc1 " + done)
        self.poll4_test()
        a.e("s_cbranch_scc1 " + lab)
        a.e(done + ":")

    def vpoll_issue(self, vdst, vaddr, soff, tag):
        self.a.vmem("buffer_load_dword v%d, v%d, %s, s%d offen sc1" % (vdst, vaddr, sr(sWS), soff), tag)

    def vpoll_check(self, vdst, vaddr, soff, tag, sok=None):
        a = self.a
        lab = a.lab("Lvp"); back = a.lab("Lvpb")
        a.vm.wait(tag)
        a.e("v_cmp_ne_u32 vcc, v%d, v%d" % (vNV, vdst))
        a.e("s_cbranch_vccnz " + lab)
        a.e(back + ":")

        def slow():
            loop = a.lab("Lvpl")
            a.e(lab + ":")
            if sok is not None:
                a.e("s_cmp_eq_u32 s%d, 0\ns_cbranch_scc1 %s" % (sok, back))
            a.e("s_mov_b32 s%d, 0" % sT5)
            a.e(loop + ":")
            a.e("buffer_load_dword v%d, v%d, %s, s%d offen sc1" % (vdst, vaddr, sr(sWS), soff))
            a.e("s_add_u32 s%d, s%d, 1\ns_cmp_gt_u32 s%d, %d" % (sT5, sT5, sT5, SPIN_MAX))
            a.e("s_waitcnt vmcnt(0)")
            a.e("s_cbranch_scc1 " + back)
            a.e("v_cmp_ne_u32 vcc, v%d, v%d" % (vNV, vdst))
            a.e("s_cbranch_vccnz " + loop)
            a.e("s_branch " + back)
        self.out_of_line.append(slow)

    def waddr(self, slot):
        k = slot >> 16
        return vWA + k, slot - (k << 16)

    def step_loads(self, st, part):
        a = self.a
        g = st["g"]; c = st["c"]
        if part == "x":
            if not st["x"]:
                return
            self.claim(XS(c), 16384, g)
            self.dma(vOX, sX, sXo, c * 128, XS(c), ("ld", g))
            self.dma(vOX, sX, sXo, c * 128 + 64 * 896, XS(c) + 8192, ("ld", g))
            return
        for (mat, slot) in st["w"]:
            self.claim(slot, 8192, g)
            if st["gate"]:
                a.e("s_mov_b64 exec, s[%d:%d]" % (sGM, sGM + 1))
            if self.o.get("fastld") and g >= 7:
                self.dma(vL16, sWm, sL, 0, slot, ("ld", g))
            else:
                self.dma(vOW, sWm, sWo, c * 64 * 2688 + mat * 896, slot, ("ld", g))
            if st["gate"]:
                a.e("s_mov_b64 exec, -1")

    def gate_write(self):
        a = self.a
        a.begin()
        a.vm.wait("gate")
        a.e("s_mov_b32 exec_hi, 0xffffff")
        a.ds("ds_write_b64 v%d, v[%d:%d]" % (vGA, vGV, vGZ), "w")
        a.e("s_mov_b32 exec_hi, -1")
        a.end()

    def claim(self, lo, n, g):
        for (l2, n2, g2) in self.claims:
            if lo < l2 + n2 and l2 < lo + n:
                assert g2 < self.lastbar, ("LDS slot reuse", lo, n, g, l2, g2, self.lastbar)
        self.claims = [x for x in self.claims if not (lo <= x[0] and x[0] + x[1] <= lo + n)]
        self.claims.append((lo, n, g))

    def step_reads(self, st, kks):
        a = self.a
        g = st["g"]; c = st["c"]
        buf = st["buf"]
        if st["x"] and c == 4 and 0 in kks:
            for kk in range(4):
                a.e("v_add_u32 v%d, 0x10000, v%d" % (vXA + kk, vXA + kk))
        for kk in kks:
            if st["x"]:
                off = XS(c) - (65536 if c >= 4 else 0)
                a.ds("ds_read_b128 %s, v%d offset:%d" % (vr(XR + 4 * (4 * c + kk), 4), vXA + kk, off), ("r", g, kk))
            for mi, (mat, slot) in enumerate(st["w"]):
                reg, off = self.waddr(slot)
                for t in range(2):
                    a.ds("ds_read_b64_tr_b16 %s, v%d offset:%d" % (vr(buf + mi * 16 + 4 * kk + 2 * t, 2), reg, off + (16 * kk + 4 * t) * 128), ("r", g, kk))

    def step_mfma(self, st, kk):
        a = self.a
        g = st["g"]; c = st["c"]
        buf = st["buf"]
        if kk % 2 == 0:
            a.lg.wait(("r", g, kk + 1))
        for mi in range(len(st["w"])):
            acc = st["acc"][mi]
            xf = vr(XR + 4 * (4 * c + kk), 4); wf = vr(buf + mi * 16 + 4 * kk, 4)
            cin = "0" if (c == 0 and kk == 0) else vr(acc, 16)
            if st["tr"][mi]:
                a.e("v_mfma_f32_32x32x16_bf16 %s, %s, %s, %s" % (vr(acc, 16), wf, xf, cin))
            else:
                a.e("v_mfma_f32_32x32x16_bf16 %s, %s, %s, %s" % (vr(acc, 16), xf, wf, cin))

    def run_steps(self, steps, look, lookx, bars, strict, pro, fills, blocks):
        a = self.a
        n = len(steps)
        if self.o.get("nofill"):
            fills = {}; blocks = {}
            if self.o["nofill"] == 2:
                for st in steps: st["gate"] = False
        issued = [0]
        self.claims = []; self.lastbar = -1
        queue = []

        issx = [0]

        def issue_upto(k, kx):
            while issued[0] <= min(k, n - 1) or issx[0] <= min(kx, 6):
                if issx[0] <= min(kx, 6) and (issx[0] <= issued[0] or issued[0] > min(k, n - 1)):
                    self.step_loads(steps[issx[0]], "x")
                    issx[0] += 1
                else:
                    self.step_loads(steps[issued[0]], "w")
                    issued[0] += 1

        def weave(budget):
            if queue:
                queue[0][2] = True
                a.play(queue[0][0], budget)
                if not queue[0][0]:
                    queue.pop(0)

        issue_upto(look[0] - 1, lookx - 1)
        pro()
        F = self.o["fill"]
        for b in range(n + 1):
            if b in bars:
                while any(q[1] is not None and q[1] < b for q in queue):
                    weave(None)
                nxt = min([x for x in bars if x > b] + [n])
                assert issued[0] >= nxt, ("lookahead too short", b)
                a.vm.wait(("ld", nxt - 1))
                if b in strict:
                    a.lg.wait_all()
                else:
                    a.lg.wait("w")
                self.barrier()
                self.lastbar = b if b in strict else b - 1
            if self.o.get("stepstamp") and b < n:
                self.stamp(20 + b)
            for kk in range(4):
                if b < n:
                    self.step_reads(steps[b], [kk])
                if b:
                    self.step_mfma(steps[b - 1], kk)
                if kk == self.o["dmapos"]:
                    issue_upto(b + look[min(b, n - 1)], b + lookx)
                else:
                    weave(F if b > 7 else self.o["fill1"])
            for (f, d) in fills.get(b, []):
                queue.append([a.record(f), d, False])
            if b in blocks:
                while queue and (queue[0][2] or any(q[1] is not None and q[1] <= b for q in queue)):
                    weave(None)
                for f in blocks[b]:
                    f()
        while queue:
            weave(None)

    def pack(self, acc, dst):
        for i in range(8):
            self.a.e("v_cvt_pk_bf16_f32 v%d, v%d, v%d" % (dst + i, acc + 2 * i, acc + 2 * i + 1))

    def zero_pad_tr(self, dst):
        for i in (6, 7):
            self.a.e("v_cndmask_b32 v%d, v%d, 0, s[%d:%d]" % (dst + i, dst + i, sUP, sUP + 1))

    def ones_col(self, dst, src):
        a = self.a
        a.begin()
        a.e("s_mov_b32 exec_lo, 0x10000000\ns_mov_b32 exec_hi, 0x10000000")
        for i in range(0, 8, 2):
            a.e("v_pk_mov_b32 %s, %s, %s op_sel:[0,1]" % (vr(dst + i, 2), src, src))
        a.e("s_mov_b64 exec, -1")
        a.end()

    def bcast_hi(self, src, dst, tmp):
        a = self.a
        a.e("v_mov_b32 v%d, v%d\nv_mov_b32 v%d, v%d" % (tmp, src, dst, src))
        a.e("v_permlane32_swap_b32 v%d, v%d" % (tmp, dst))

    def phi(self, acc, T):
        a = self.a
        for r in range(0, 16, 8):
            for i in range(0, 8, 2):
                a.e("v_pk_mul_f32 %s, %s, s[%d:%d]" % (vr(T + i, 2), vr(acc + r + i, 2), sL2E, sL2E + 1))
            for i in range(8):
                a.e("v_exp_f32 v%d, v%d" % (T + i, T + i))
            for i in range(0, 8, 2):
                a.e("v_pk_add_f32 %s, %s, 1.0 op_sel_hi:[1,0]" % (vr(acc + r + i, 2), vr(acc + r + i, 2)))
            for i in range(8):
                a.e("v_med3_f32 v%d, v%d, v%d, 1.0" % (acc + r + i, T + i, acc + r + i))
            for i in range(0, 8, 2):
                a.e("v_pk_add_f32 %s, %s, s[%d:%d]" % (vr(acc + r + i, 2), vr(acc + r + i, 2), sEPS, sEPS + 1))

    def scale16(self, acc, vs):
        a = self.a
        a.e("v_mov_b32 v%d, v%d" % (vs + 1, vs))
        for r in range(0, 16, 2):
            a.e("v_pk_mul_f32 %s, %s, %s" % (vr(acc + r, 2), vr(acc + r, 2), vr(vs, 2)))

    def gate_from(self, src):
        a = self.a
        self.bcast_hi(src, vGate, vT1)
        a.e("v_mul_f32 v%d, 0x%x, v%d" % (vGate, f2u(-LOG2E), vGate))
        a.e("v_exp_f32 v%d, v%d" % (vGate, vGate))
        a.e("v_add_f32 v%d, 1.0, v%d" % (vGate, vGate))
        a.e("v_rcp_f32 v%d, v%d" % (vGate, vGate))

    def store2k(self, src, sbase, tag):
        a = self.a
        a.vmem("buffer_store_dwordx4 %s, v%d, %s, s%d offen sc1" % (vr(src, 4), vL16, sr(sWS), sbase), tag)
        a.vmem("buffer_store_dwordx4 %s, v%d, %s, s%d offen offset:1024 sc1" % (vr(src + 4, 4), vL16, sr(sWS), sbase), tag)

    def nonce_issue(self):
        a = self.a
        a.e("v_mov_b32 v%d, 0" % vNZ)
        a.vmem("global_load_dword v%d, v%d, s[20:21] sc1" % (vNV, vNZ), "nonce")

    def nonce_take(self):
        a = self.a
        lab = a.lab("Lnon"); back = a.lab("Lnonb")
        a.vm.wait("nonce")
        a.e("v_cmp_eq_u32 vcc, 0, v%d" % vNV)
        a.e("s_cbranch_vccnz " + lab)
        a.e(back + ":")
        a.e("v_readfirstlane_b32 s%d, v%d" % (sN, vNV))
        a.e("s_add_u32 s%d, s%d, %d" % (sT1, sOBf, FL_OA - FL_OB))
        a.e("s_add_u32 s%d, s22, s%d\ns_addc_u32 s%d, s23, 0" % (sFA, sT1, sFA + 1))
        a.e("s_add_u32 s%d, s22, s%d\ns_addc_u32 s%d, s23, 0" % (sFB, sOBf, sFB + 1))

        def slow():
            loop = a.lab("Lnonl")
            a.e(lab + ":")
            a.e("s_mov_b32 s%d, 0" % sT5)
            a.e(loop + ":")
            a.e("global_load_dword v%d, v%d, s[20:21] sc1" % (vNV, vNZ))
            a.e("s_add_u32 s%d, s%d, 1\ns_cmp_gt_u32 s%d, %d" % (sT5, sT5, sT5, SPIN_MAX))
            a.e("s_waitcnt vmcnt(0)")
            a.e("s_cbranch_scc1 " + back)
            a.e("v_cmp_eq_u32 vcc, 0, v%d" % vNV)
            a.e("s_cbranch_vccnz " + loop)
            a.e("s_branch " + back)
        self.out_of_line.append(slow)

    def load_gate(self):
        a = self.a
        a.e("s_lshl_b32 s%d, s%d, 1\ns_add_u32 s%d, s%d, s%d" % (sH, sHP, sH, sH, sE))
        a.e("s_lshl_b32 s%d, s%d, 2\ns_add_u32 s%d, s%d, s%d" % (sGT, sRB, sGT, sGT, sRT))
        a.e("v_and_b32 v9, 31, v%d\nv_lshrrev_b32 v10, 5, v%d\nv_bfe_u32 v11, v%d, 1, 3" % (vLane, vLane, vLane))
        a.e("s_lshl_b32 s%d, s%d, 12" % (sT1, sRT))
        a.e("v_lshl_add_u32 v9, v9, 7, s%d" % sT1)
        for kk in range(4):
            a.e("v_add_u32 v%d, %d, v10\nv_xor_b32 v%d, v%d, v11\nv_lshl_add_u32 v%d, v%d, 4, v9" % (vT, 2 * kk, vT, vT, vXA + kk, vT))
        a.e("v_bfe_u32 v%d, v%d, 4, 1\nv_and_b32 v%d, 3, v%d" % (vT1, vLane, vT2, vLane))
        a.e("v_lshlrev_b32 v%d, 5, v%d\nv_lshl_add_u32 v%d, v%d, 3, v%d" % (vT1, vT1, vT1, vT2, vT1))
        a.e("s_mul_i32 s%d, s%d, 56" % (sT1, sE))
        a.e("v_cmp_eq_u32 s[%d:%d], 56, v%d" % (sT2, sT2 + 1, vT1))
        a.e("v_add_u32 v%d, s%d, v%d\nv_mov_b32 v%d, 112" % (vT1, sT1, vT1, vT2))
        a.e("v_cndmask_b32 v%d, v%d, v%d, s[%d:%d]" % (vT1, vT1, vT2, sT2, sT2 + 1))
        a.e("v_bfe_u32 v%d, v%d, 2, 2\nv_and_b32 v%d, 2, v%d\nv_lshlrev_b32 v%d, 5, v%d\nv_xor_b32 v%d, v%d, v%d" % (vT2, vLane, vT3, vT2, vT3, vT3, vT1, vT1, vT3))
        a.e("v_lshl_add_u32 v%d, v10, 3, v%d\nv_lshl_add_u32 v%d, v%d, 7, v%d" % (vT2, vT2, vWA, vT2, vT1))
        a.e("v_add_u32 v%d, 0x10000, v%d\nv_add_u32 v%d, 0x20000, v%d" % (vWA + 1, vWA, vWA + 2, vWA))
        nn = a.lab("Lnn")
        a.e("s_or_b32 s%d, s2, s%d\ns_cmp_lg_u32 s%d, 0\ns_cbranch_scc1 %s" % (sT1, sW, sT1, nn))
        a.e("s_memrealtime s[%d:%d]\ns_waitcnt lgkmcnt(0)\ns_or_b32 s%d, s%d, 1" % (sT2, sT2 + 1, sT2, sT2))
        a.e("v_mov_b32 v%d, s%d\nv_mov_b32 v%d, 0" % (vT1, sT2, vT2))
        a.e("s_mov_b64 exec, 1\nglobal_store_dword v%d, v%d, s[20:21] sc1\ns_mov_b64 exec, -1" % (vT2, vT1))
        a.e(nn + ":")
        self.srd(sWS, 22, WS_SIZE if not self.prof else (16 << 20))
        self.srd(sG, 16, 896)
        a.e("v_lshrrev_b32 v%d, 3, v%d\nv_lshlrev_b32 v%d, 7, v%d" % (vT2, vLane, vT, vT2))
        a.e("v_and_b32 v%d, 7, v%d\nv_lshl_add_u32 v%d, v%d, 1, v%d" % (vT1, vLane, vT, vT1, vT))
        a.e("s_lshl_b32 s%d, s%d, 4" % (sT0, sW))
        a.vmem("buffer_load_ushort v%d, v%d, %s, s%d offen" % (vGV, vT, sr(sG), sT0), "gate")

    def setup_scalar(self):
        a = self.a
        self.srd(sWO1, 14, 448 * 896)
        self.srd(sWO2, 8, 448 * 896)
        self.srd(sOUT, 18, 2048 * 896)
        a.e("s_mov_b32 s%d, 0xF7F77F7F\ns_mov_b32 s%d, 0xF7F77F7F" % (sGM, sGM + 1))
        a.e("s_lshr_b32 s%d, s2, 4\ns_cmp_eq_u32 s%d, 0\ns_cselect_b32 s%d, 16, 0\ns_add_u32 s%d, s%d, s%d" % (sT3, sTY, sT4, sT3, sT3, sT4))
        a.e("s_mul_i32 s%d, s%d, 37\ns_lshr_b32 s%d, s%d, 8" % (sT1, sT3, sT1, sT1))
        a.e("s_mul_i32 s%d, s%d, 7\ns_sub_u32 s%d, s%d, s%d" % (sT2, sT1, sT4, sT3, sT2))
        a.e("s_cmp_ge_u32 s%d, 28\ns_cselect_b32 s%d, 1, 0\ns_cselect_b32 s%d, 0, s%d\ns_cselect_b32 s%d, 0, s%d" % (sT3, sT5, sT4, sT4, sT1, sT1))
        a.e("s_and_b32 s%d, s2, 7\ns_lshl_b32 s%d, s%d, 2\ns_add_u32 s%d, s%d, s%d" % (sT2, sT2, sT2, sT1, sT1, sT2))
        a.e("s_lshl_b32 s%d, s%d, 1\ns_add_u32 s%d, s%d, s%d" % (sT1, sT1, sT1, sT1, sE))
        a.e("s_mul_i32 s%d, s%d, %d\ns_lshl_b32 s%d, s%d, 7\ns_add_u32 s%d, s%d, s%d" % (sOut, sT1, 32 * 896, sT4, sT4, sOut, sOut, sT4))
        a.e("s_lshl_b32 s%d, s%d, 5\ns_add_u32 s%d, s%d, s%d" % (sT2, sRT, sOut, sOut, sT2))
        a.e("s_lshl_b32 s%d, s%d, 2\ns_add_u32 s%d, s%d, s%d\ns_lshl_b32 s%d, s%d, 2" % (sT1, sT1, sT1, sT1, sRT, sT1, sT1))
        a.e("s_mul_i32 s%d, s%d, %d\ns_add_u32 s%d, s%d, %d" % (sOBf, sT1, FS, sOBf, sOBf, FL_OB))
        a.e("s_lshl_b32 s%d, s%d, 11" % (sT1, sT1))
        for br, wsb in enumerate((WS_OB, WS_OA)):
            a.e("s_add_u32 s%d, s%d, %d\ns_add_u32 s%d, s%d, %d" % (sOD[br], sT1, wsb, sOD[br] + 1, sT1, wsb + 4096))
        a.e("s_mul_i32 s%d, s%d, %d\ns_add_u32 s%d, s%d, s%d\ns_mov_b32 s%d, s%d" % (sHK, sW, 8 * 896, sHK, sHK, sT4, sHV, sT5))
        a.e("s_lshl_b32 s%d, s%d, 4\ns_add_u32 s%d, s%d, s%d" % (sT2, sGT, sT2, sT2, sH))
        a.e("s_cmp_eq_u32 s%d, 0\ns_cselect_b32 s%d, 0, %d\ns_cselect_b32 s%d, 0, %d" % (sTY, sT1, WS_OB - WS_OA, sT3, FL_OB - FL_OA))
        a.e("s_lshl_b32 s%d, s%d, 11\ns_add_u32 s%d, s%d, s%d\ns_add_u32 s%d, s%d, %d" % (sOo, sT2, sOo, sOo, sT1, sOo, sOo, WS_OA))
        a.e("s_mul_i32 s%d, s%d, %d\ns_add_u32 s%d, s%d, s%d\ns_add_u32 s%d, s%d, %d" % (sFO, sT2, FS, sFO, sFO, sT3, sFO, sFO, FL_OA))
        a.e("v_lshlrev_b32 v%d, 24, v%d\nv_mov_b32 v%d, 0" % (vF0, vLane, vGZ))
        a.e("v_and_b32 v%d, 7, v%d\nv_lshlrev_b32 v%d, 7, v%d" % (vT1, vLane, vGA, vT1))
        a.e("v_and_b32 v%d, 2, v%d\nv_lshlrev_b32 v%d, 5, v%d\nv_xor_b32 v%d, 112, v%d" % (vT1, vT1, vT1, vT1, vT1, vT1))
        a.e("v_add3_u32 v%d, v%d, v%d, s%d" % (vGA, vGA, vT1, sL))
        a.e("v_lshrrev_b32 v%d, 3, v%d\nv_lshl_add_u32 v%d, v%d, 13, v%d" % (vT1, vLane, vGA, vT1, vGA))

    def setup_late(self):
        a = self.a
        a.e("s_mov_b32 s%d, s%d\ns_mov_b32 s%d, s%d\ns_mov_b32 s%d, 0" % (sWoP, sHK, sIdle, sHV, sOBd))
        a.e("v_lshrrev_b32 v%d, 3, v%d\nv_mul_u32_u24 v%d, 896, v%d" % (vT, vLane, vOX, vT))
        a.e("v_and_b32 v%d, 2, v%d\nv_lshlrev_b32 v%d, 1, v%d" % (vT, vT, vT, vT))
        a.e("v_and_b32 v%d, 7, v%d\nv_xor_b32 v%d, v%d, v%d" % (vT1, vLane, vT, vT, vT1))
        a.e("v_lshl_add_u32 v%d, v%d, 4, v%d" % (vOX, vT, vOX))

    def setup_p3v(self):
        a = self.a
        a.e("v_lshrrev_b32 v%d, 5, v%d\nv_bfe_u32 v%d, v%d, 2, 2" % (vT1, vLane, vT2, vLane))
        a.e("v_lshl_add_u32 v%d, v%d, 2, v%d" % (vT3, vT1, vT2))
        a.e("s_mul_i32 s%d, s%d, %d\ns_add_u32 s%d, s%d, %d" % (sT1, sRT, 112 * 128, sT1, sT1, WO1_LDS))
        a.e("v_lshl_add_u32 v%d, v%d, 7, s%d" % (vT3, vT3, sT1))
        a.e("v_and_b32 v%d, 2, v%d\nv_lshlrev_b32 v%d, 5, v%d" % (vT2, vT2, vT2, vT2))
        a.e("v_and_b32 v%d, 3, v%d\nv_lshlrev_b32 v%d, 3, v%d" % (vT4, vLane, vT4, vT4))
        a.e("v_and_b32 v%d, 31, v%d\nv_mul_u32_u24 v%d, 896, v%d\nv_lshl_add_u32 v%d, v%d, 4, v%d" % (vOA, vLane, vOA, vOA, vOA, vT1, vOA))
        a.e("v_lshlrev_b32 v%d, 9, v%d" % (vT1, vT1))
        for ct in range(2):
            a.e("v_bfe_u32 v%d, v%d, 4, 1\nv_add_u32 v%d, %d, v%d\nv_xor_b32 v%d, s%d, v%d" % (vT, vLane, vT, 2 * ct, vT, vT, sRT, vT))
            a.e("v_lshl_add_u32 v%d, v%d, 5, v%d\nv_xor_b32 v%d, v%d, v%d" % (vT, vT, vT4, vT, vT, vT2))
            a.e("v_add_u32 v%d, v%d, v%d\nv_sub_u32 v%d, v%d, v%d" % (vW1 + ct, vT3, vT, vW1 + 2 + ct, vW1 + ct, vT1))
        a.e("s_mov_b32 s%d, %d\ns_mov_b32 s%d, %d" % (sT3, WO1_LDS + 8192, sD2, -8192))
        a.e("s_cmp_eq_u32 s%d, 0\ns_cselect_b32 s%d, %d, s%d\ns_cselect_b32 s%d, %d, s%d" % (sRT, sT3, WO1_LDS - WO2_HEAD, sT3, sD2, WO2_HEAD, sD2))
        for i in range(4):
            a.e("v_subrev_u32 v%d, s%d, v%d" % (vW2 + i, sT3, vW1 + i))
        a.e("s_mul_i32 s%d, s%d, 24576\ns_add_u32 s%d, s%d, %d" % (sT1, sE, sT1, sT1, RED))
        for b in range(4):
            a.e("s_xor_b32 s%d, s%d, %d\ns_mul_i32 s%d, s%d, 6144\ns_add_u32 s%d, s%d, s%d" % (sT2, sRT, b, sT2, sT2, sT2, sT2, sT1))
            a.e("v_add_u32 v%d, s%d, v%d" % (vRD + b, sT2, vL16))
        a.e("s_mov_b32 s%d, 0\ns_mov_b32 s%d, -1" % (sUP, sUP + 1))

    def o_loads(self, br):
        for i in range(8):
            self.a.vmem("buffer_load_dwordx4 %s, v%d, %s, s%d offen offset:%d sc1" % (vr(OF[br] + 4 * i, 4), vL16, sr(sWS), sOD[br] + (i >> 2), 1024 * (i % 4)), ("o", br, i))

    def wo_load(self, br, i):
        if br == 0:
            self.dma(vOX, sWO1, sWoP, i * 64 * 896, WO1_LDS + i * 8192, "wo1")
        else:
            self.dma(vOX, sWO2, sWoP, i * 64 * 896, wo2_slot(i), "wo2")

    def wo_read(self, br, i, ts=(0, 1)):
        hh, s = i >> 1, i & 1
        for t in ts:
            for ct in range(2):
                d = WF + 4 * ((br * 8 + i) * 2 + ct)
                reg = (vW1, vW2)[br] + ct + (2 if (s == 1 and t == 1) else 0)
                row = 28 * hh + 16 * s + 8 * t
                if br == 1 and row >= 64:
                    row -= 64
                self.a.ds("ds_read_b64_tr_b16 %s, v%d offset:%d" % (vr(d + 2 * t, 2), reg, row * 128), ("wf", br, i))

    def type_a(self):
        a = self.a
        o = self.o
        steps = []
        for p, (mat, slots, tr, acc) in enumerate([(1, A_WK, True, ACC0), (2, A_WV, False, ACC1), (0, A_WQ, True, ACC0)]):
            for c in range(7):
                steps.append(dict(g=7 * p + c, c=c, x=(p == 0), w=[(mat, slots[c])], tr=[tr], acc=[acc], gate=(p == 2), buf=WB + 16 * ((7 * p + c) % 2)))

        def publish(so, area, tag):
            for h in range(2):
                a.vmem("buffer_store_dwordx4 %s, v%d, %s, s%d offen offset:%d sc1" % (vr(PK + 4 * h, 4), vL16, sr(sWS), so, 1024 * h), tag)
                a.ds("ds_write_b128 v%d, %s offset:%d" % (vOwn, vr(PK + 4 * h, 4), area + 1024 * h), "w")
                if h == 0:
                    for k in range(o["spread"]):
                        a.do(lambda: None, 100)

        def epi_k():
            self.stamp(1)
            for r in range(0, 16, 2):
                a.e("v_pk_mul_f32 %s, %s, %s" % (vr(ACC0 + r, 2), vr(ACC0 + r, 2), vr(vS if r < 12 else vS2, 2)))
            self.pack(ACC0, PK)
            publish(sKo, KAREA, "stK")

        def epi_v():
            self.stamp(2)
            self.pack(ACC1, PK)
            self.ones_col(PK, vr(vOne, 2))
            publish(sVo, VAREA, "stV")

        def flag(tag, so):
            def f():
                a.vm.wait(tag)
                self.set_flag(so)
            return f

        def setup_a():
            a.e("v_lshrrev_b32 v%d, 4, v%d\nv_lshl_add_u32 v%d, v%d, 13, v%d" % (vT1, vLane, vGA, vT1, vGA))
            a.e("v_add_u32 v%d, 49152, v%d" % (vGA, vGA))
            a.e("s_mov_b32 exec_lo, 0\ns_mov_b32 exec_hi, 0xff0000\nv_add_u32 v%d, 24576, v%d\ns_mov_b64 exec, -1" % (vGA, vGA))
            a.e("s_lshl_b32 s%d, s%d, 6\ns_add_u32 s%d, s%d, s%d" % (sT1, sH, sT1, sT1, sGT))
            a.e("s_lshl_b32 s%d, s%d, 11\ns_add_u32 s%d, s%d, %d" % (sKo, sT1, sVo, sKo, WS_V))
            a.e("s_mul_i32 s%d, s%d, %d\ns_add_u32 s%d, s%d, %d\ns_add_u32 s%d, s%d, %d" % (sKf, sT1, FS, sVf, sKf, FL_V, sKf, sKf, FL_K))
            a.e("s_mul_i32 s%d, s%d, 24576\ns_lshl_b32 s%d, s%d, 11\ns_add_u32 s%d, s%d, s%d" % (sT1, sE, sT2, sRT, sT1, sT1, sT2))
            a.e("v_add_u32 v%d, s%d, v%d\nv_add_u32 v%d, 16384, v%d\nv_add_u32 v%d, %d, v%d" % (vKA, sT1, vL16, vOwn, vKA, vVA, VAREA, vKA))
            a.e("s_add_u32 s%d, s%d, s%d" % (sHL, sT1, sT2))
            c = f2u(LOG2E / math.sqrt(28.0))
            a.e("v_mov_b32 v%d, 0x%x\nv_mov_b32 v%d, 0x%x\nv_mov_b32 v%d, 0\nv_mov_b32 v%d, 0" % (vS, c, vS + 1, c, vS2, vS2 + 1))
            a.e("s_mov_b32 exec_hi, 0\nv_mov_b32 v%d, 0x%x\nv_mov_b32 v%d, 0x%x\ns_mov_b32 exec_hi, -1" % (vS2, c, vS2 + 1, c))
            a.e("v_mov_b32 v%d, 0x3f803f80\nv_mov_b32 v%d, 0x3f803f80" % (vOne, vOne + 1))
            a.e("v_and_b32 v%d, 1, v%d\nv_mul_u32_u24 v%d, %d, v%d" % (vPA, vLane, vPA, FS, vPA))
            a.e("v_and_b32 v%d, 3, v%d\nv_mul_u32_u24 v%d, %d, v%d" % (vPB, vLane, vPB, FS, vPB))
            for r in range(16):
                c0 = (r & 3) + 8 * (r >> 2)
                a.e("s_bfm_b32 s%d, %d, 0\ns_bfm_b32 s%d, %d, 0" % (sMASK + 2 * r, c0, sMASK + 2 * r + 1, c0 + 4))
            a.e("v_mov_b32 v%d, 0xffff\nv_mov_b32 v%d, 0xffff0000" % (vT1, vT2))
            for i in range(8):
                a.e("v_cndmask_b32 v%d, 0, v%d, s[%d:%d]" % (vT3, vT1, sMASK + 4 * i, sMASK + 4 * i + 1))
                a.e("v_cndmask_b32 v%d, 0, v%d, s[%d:%d]" % (vT4, vT2, sMASK + 4 * i + 2, sMASK + 4 * i + 3))
                a.e("v_or_b32 v%d, v%d, v%d" % (MK + i, vT3, vT4))

        def setup_halo():
            a.e("s_lshl_b32 s%d, s%d, 2\ns_lshl_b32 s%d, s%d, 1\ns_add_u32 s%d, s%d, s%d\ns_sub_u32 s%d, s%d, 8" % (sT1, sRB, sT2, sRT, sT1, sT1, sT2, sT1, sT1))
            a.e("s_max_i32 s%d, s%d, 0\ns_lshl_b32 s%d, s%d, 6\ns_add_u32 s%d, s%d, s%d" % (sT2, sT1, sT3, sH, sT2, sT2, sT3))
            a.e("s_mul_i32 s%d, s%d, %d\ns_add_u32 s%d, s%d, %d\ns_add_u32 s%d, s%d, %d" % (sHFk, sT2, FS, sHFv, sHFk, FL_V, sHFk, sHFk, FL_K))
            a.e("s_lshl_b32 s%d, s%d, 11\ns_cmp_ge_i32 s%d, 0\ns_cselect_b32 s%d, s%d, %d\ns_cselect_b32 s%d, 1, 0" % (sT2, sT2, sT1, sHK, sT2, OOB, sHok))
            a.e("s_add_u32 s%d, s%d, %d" % (sHV, sHK, WS_V))

        def halo_poll(sf, vd, tag):
            return lambda: self.vpoll_issue(vd, vPA, sf, tag)

        def halo_fetch(sf, vd, tag, so, area, nm):
            def f():
                for e in range(2):
                    self.claim(area + 24576 * e, 16384, 99)
                self.vpoll_check(vd, vPA, sf, tag, sHok)
                a.e("s_add_u32 m0, s%d, %d" % (sHL, area))
                for i in range(4):
                    a.vmem("buffer_load_dwordx4 v%d, %s, s%d offen offset:%d sc1 lds" % (vL16, sr(sWS), so, 1024 * i), nm)
                self.stamp(4 if nm == "hK" else 5)
            return f

        fills = {0: [(self.setup_scalar, 6), (self.nonce_issue, 6), (setup_a, 6)], 4: [(self.setup_late, 6), (setup_halo, 6), (self.setup_p3v, 6)],
                 7: [(epi_k, o["A_fk"])], 8: [(self.gate_write, 12)], 14: [(epi_v, o["A_fv"])]}
        blocks = {}
        def add(b, f):
            blocks.setdefault(b, []).append(f)
        add(6, self.nonce_take)
        add(o["A_fk"], flag("stK", sKf)); add(o["A_fv"], flag("stV", sVf))
        add(o["A_pk"], halo_poll(sHFk, vP1, "pK")); add(o["A_hk"], halo_fetch(sHFk, vP1, "pK", sHK, KAREA, "hK"))
        add(o["A_pv"], halo_poll(sHFv, vP2, "pV"))
        self.run_steps(steps, o["LA"], o["LAx"], o["barA"], [], self.load_gate, fills, blocks)
        self.stamp(3)
        if o.get("nofill"):
            a.e("s_branch L_done")
        self.v_fetch = halo_fetch(sHFv, vP2, "pV", sHV, VAREA, "hV")
        a.e("v_mov_b32 v%d, v%d" % (vLG, ACC0 + 12))
        self.pack(ACC0, PK)
        a.vm.wait("hK")
        a.lg.wait_all()
        self.barrier()
        self.stamp(6)
        self.attention()
        self.stamp(7)
        self.store2k(PK2, sOo, "stO")
        a.e("s_cmp_eq_u32 s%d, 1\ns_cbranch_scc1 L_idle" % sIdle)
        nob = a.lab("Lnob")
        a.vm.wait("pO")
        a.e("v_cmp_ne_u32 vcc, v%d, v%d" % (vNV, vP1))
        self.barrier()
        a.e("s_cbranch_vccnz L_p3")
        self.o_loads(0)
        a.e("s_mov_b32 s%d, 1" % sOBd)
        a.e("s_branch L_p3")
        a.e("L_idle:")
        a.e("s_waitcnt vmcnt(0)")
        self.set_flag(sFO)
        a.e("s_branch L_done")
        self.att_rare()

    def attention(self):
        a = self.a
        C, S0, S1, O = 48, 64, 112, 128
        P = [144, 152]; PF = 160
        KF = [168, 176]; VF = [184, 192]
        vM = 200
        S = [S0, S1]
        self.att = dict(S0=S0, O=O, P=P[0], KF=KF[0], VF=VF[0], vM=vM)

        def rdK(d, b):
            for s in range(2):
                a.ds("ds_read_b128 %s, v%d offset:%d" % (vr(KF[b] + 4 * s, 4), vKA, d * 2048 + s * 1024), ("K", d))

        def rdV(d, b):
            for s in range(2):
                a.ds("ds_read_b128 %s, v%d offset:%d" % (vr(VF[b] + 4 * s, 4), vVA, d * 2048 + s * 1024), ("V", d))

        def qk(d, b, dst, cin, s):
            if s == 0:
                a.lg.wait(("K", d))
            a.e("v_mfma_f32_32x32x16_bf16 %s, %s, %s, %s" % (vr(dst, 16), vr(KF[b] + 4 * s, 4), vr(PK + 4 * s, 4), cin if s == 0 else vr(dst, 16)))

        def pv(d, b, p, s, first=False):
            if s == 0:
                a.lg.wait(("V", d))
            a.e("v_mfma_f32_32x32x16_bf16 %s, %s, %s, %s" % (vr(O, 16), vr(VF[b] + 4 * s, 4), vr(p + 4 * s, 4), "0" if (first and s == 0) else vr(O, 16)))

        def exps(blk, lo, hi):
            for r in range(lo, hi):
                a.e("v_exp_f32 v%d, v%d" % (blk + r, blk + r))

        def cvts(blk, p, lo, hi):
            for i in range(lo, hi):
                a.e("v_cvt_pk_bf16_f32 v%d, v%d, v%d" % (p + i, blk + 2 * i, blk + 2 * i + 1))

        AH = self.o["ahead"]
        SR = [S1, 16, 32, S0][:AH] + [S0]
        def sblk(d):
            return ([S1, 16, 32][:AH] + [S0])[(7 - d) % (AH + 1)]
        kb = lambda d: (7 - d) & 1
        wo_q = [(0, i) for i in range(7)]
        def wo_some(n):
            for _ in range(n):
                if wo_q:
                    self.wo_load(*wo_q.pop(0))

        rdK(8, 0); rdK(0, 1)
        qk(8, 0, S0, "0", 0); qk(8, 0, S0, "0", 1)
        qk(0, 1, S1, "0", 0); qk(0, 1, S1, "0", 1)
        rdK(7, 0); rdK(6, 1); rdV(8, 0)
        self.v_fetch()
        self.gate_from(vLG)
        for r in range(16):
            a.e("v_cndmask_b32 v%d, v%d, v%d, s[%d:%d]" % (S0 + r, S0 + r, S1 + r, sMASK + 2 * r, sMASK + 2 * r + 1))
        a.e("v_max3_f32 v%d, v%d, v%d, v%d" % (vM, S0, S0 + 1, S0 + 2))
        a.e("v_max3_f32 v%d, v%d, v%d, v%d" % (vT1, S0 + 3, S0 + 4, S0 + 5))
        for r in (6, 10):
            a.e("v_max3_f32 v%d, v%d, v%d, v%d" % (vM, S0 + r, S0 + r + 1, vM))
            a.e("v_max3_f32 v%d, v%d, v%d, v%d" % (vT1, S0 + r + 2, S0 + r + 3, vT1))
        a.e("v_max3_f32 v%d, v%d, v%d, v%d" % (vM, S0 + 14, S0 + 15, vM))
        a.e("v_max_f32 v%d, v%d, v%d\nv_max_f32 v%d, v%d, v%d" % (vT2, vT1, vM, vM, vT1, vM))
        a.e("v_permlane32_swap_b32 v%d, v%d" % (vT2, vM))
        a.e("v_max_f32 v%d, v%d, v%d" % (vM, vM, vT2))
        a.e("v_sub_f32 v%d, 0, v%d\nv_sub_f32 v%d, 0, v%d" % (C, vM, C + 1, vM))
        for r in range(2, 16, 2):
            a.e("v_pk_mov_b32 %s, %s, %s op_sel:[0,1]" % (vr(C + r, 2), vr(C, 2), vr(C, 2)))
        for r in range(0, 16, 2):
            a.e("v_pk_add_f32 %s, %s, %s" % (vr(S0 + r, 2), vr(S0 + r, 2), vr(C, 2)))
        self.stamp(43)
        done = 0
        for n in range(AH):
            d = 7 - n
            qk(d, kb(d), sblk(d), vr(C, 16), 0)
            exps(S0, done, done + 2); done += 2
            qk(d, kb(d), sblk(d), vr(C, 16), 1)
            rdK(d - 2, kb(d))
            exps(S0, done, done + 3); done += 3
        exps(S0, done, 16)
        self.pack(S0, P[0])
        for i in range(8):
            a.e("v_and_b32 v%d, v%d, v%d" % (PF + i, P[0] + i, MK + i))
        for i in range(8):
            a.e("v_xor_b32 v%d, v%d, v%d" % (P[0] + i, P[0] + i, PF + i))
        pv(8, 0, P[0], 0, True); pv(8, 0, P[0], 1)

        for d in range(7, 0, -1):
            cur = sblk(d)
            pb = P[(8 - d) & 1]
            q = d - AH
            if q >= 1:
                qk(q, kb(q), sblk(q), vr(C, 16), 0)
            exps(cur, 0, 4)
            if q >= 1:
                qk(q, kb(q), sblk(q), vr(C, 16), 1)
            if q - 2 >= 1:
                rdK(q - 2, kb(q))
            if d > 1 and d != 7:
                rdV(d - 1, kb(d - 1))
            if q == 1:
                self.stamp(46)
                self.barrier()
                self.stamp(47)
                wo_q += [(1, i) for i in range(7)]
            exps(cur, 4, 8)
            cvts(cur, pb, 0, 4)
            if d == 7:
                self.stamp(44)
                a.vm.wait("hV")
                self.barrier()
                self.stamp(45)
                rdV(0, 1); rdV(7, 0)
            wo_some(2 if (q <= 1 or d == 7) else 1)
            exps(cur, 8, 12)
            if d != 7:
                pv(d, kb(d), pb, 0)
            wo_some(2 if q <= 1 else 1)
            if d == self.o["A_ob"]:
                assert not wo_q
                self.vpoll_issue(vP1, vPB, sOBf, "pO")
            exps(cur, 12, 16)
            cvts(cur, pb, 4, 8)
            if d == 7:
                pv(0, 1, PF, 0); pv(0, 1, PF, 1)
                rdV(6, 1)
                pv(7, 0, pb, 0)
            pv(d, kb(d), pb, 1)
        a.e("s_mov_b32 s%d, 0x%x\nv_mov_b32 v%d, 0x%x" % (sT1, f2u(2.0 ** -60), vT4, f2u(2.0 ** 60)))
        self.bcast_hi(O + 12, vT2, vT1)
        a.e("v_med3_f32 v%d, v%d, s%d, v%d" % (vT1, vT2, sT1, vT4))
        a.e("v_cmp_neq_f32 vcc, v%d, v%d" % (vT1, vT2))
        a.e("s_cbranch_vccnz L_att_fb")
        a.e("L_att_ok:")
        a.e("v_rcp_f32 v%d, v%d" % (vT2, vT2))
        a.e("v_mul_f32 v%d, v%d, v%d" % (vT2, vT2, vGate))
        self.scale16(O, vT2)
        self.pack(O, PK2)
        self.zero_pad_tr(PK2)

    def att_rare(self):
        a = self.a
        t = self.att
        S0, O, P, KF, VF, vM = (t[k] for k in ("S0", "O", "P", "KF", "VF", "vM"))
        sDmin = sT4
        sD, sPass, sOff = sT2, sT3, sT5
        a.e("L_att_fb:")
        a.e("s_sub_u32 s%d, 8, s%d" % (sDmin, sGT))
        a.e("s_mov_b32 s%d, 0" % sPass)
        a.e("v_mov_b32 v%d, 0x%x\nv_mov_b32 v%d, 0x%x" % (vM, NEG, vT3, NEG))
        for r in range(16):
            a.e("v_mov_b32 v%d, 0" % (O + r))
        a.e("L_fb_pass:")
        a.e("s_max_i32 s%d, s%d, 0" % (sD, sDmin))
        a.e("L_fb_tile:")
        a.e("s_lshl_b32 s%d, s%d, 6\ns_add_u32 s%d, s%d, s%d\ns_add_u32 s%d, s%d, s%d\ns_sub_u32 s%d, s%d, 8" % (sOff, sH, sOff, sOff, sGT, sOff, sOff, sD, sOff, sOff))
        a.e("s_lshl_b32 s%d, s%d, 11\ns_add_u32 s%d, s%d, %d" % (sOff, sOff, sOff, sOff, WS_K))
        a.e("buffer_load_dwordx4 %s, v%d, %s, s%d offen sc1" % (vr(KF, 4), vL16, sr(sWS), sOff))
        a.e("buffer_load_dwordx4 %s, v%d, %s, s%d offen offset:1024 sc1" % (vr(KF + 4, 4), vL16, sr(sWS), sOff))
        a.e("s_lshl_b32 s%d, s%d, 11\nv_add_u32 v%d, s%d, v%d" % (sOff, sD, vT4, sOff, vVA))
        a.e("ds_read_b128 %s, v%d\nds_read_b128 %s, v%d offset:1024" % (vr(VF, 4), vT4, vr(VF + 4, 4), vT4))
        a.e("s_waitcnt vmcnt(0) lgkmcnt(0)")
        a.e("v_mfma_f32_32x32x16_bf16 %s, %s, %s, 0" % (vr(S0, 16), vr(KF, 4), vr(PK, 4)))
        a.e("v_mfma_f32_32x32x16_bf16 %s, %s, %s, %s" % (vr(S0, 16), vr(KF + 4, 4), vr(PK + 4, 4), vr(S0, 16)))
        a.e("s_cmp_eq_u32 s%d, 0\ns_cbranch_scc0 L_fb_n0" % sD)
        for r in range(16):
            a.e("v_cndmask_b32 v%d, v%d, v%d, s[%d:%d]" % (S0 + r, vT3, S0 + r, sMASK + 2 * r, sMASK + 2 * r + 1))
        a.e("L_fb_n0:")
        a.e("s_cmp_eq_u32 s%d, 8\ns_cbranch_scc0 L_fb_n8" % sD)
        for r in range(16):
            a.e("v_cndmask_b32 v%d, v%d, v%d, s[%d:%d]" % (S0 + r, S0 + r, vT3, sMASK + 2 * r, sMASK + 2 * r + 1))
        a.e("L_fb_n8:")
        a.e("s_cmp_eq_u32 s%d, 0\ns_cbranch_scc0 L_fb_p1" % sPass)
        for r in range(0, 16, 2):
            a.e("v_max3_f32 v%d, v%d, v%d, v%d" % (vM, S0 + r, S0 + r + 1, vM))
        a.e("s_branch L_fb_next")
        a.e("L_fb_p1:")
        for r in range(16):
            a.e("v_sub_f32 v%d, v%d, v%d" % (S0 + r, S0 + r, vM))
        for r in range(16):
            a.e("v_exp_f32 v%d, v%d" % (S0 + r, S0 + r))
        self.pack(S0, P)
        a.e("v_mfma_f32_32x32x16_bf16 %s, %s, %s, %s" % (vr(O, 16), vr(VF, 4), vr(P, 4), vr(O, 16)))
        a.e("v_mfma_f32_32x32x16_bf16 %s, %s, %s, %s" % (vr(O, 16), vr(VF + 4, 4), vr(P + 4, 4), vr(O, 16)))
        a.e("L_fb_next:")
        a.e("s_add_u32 s%d, s%d, 1\ns_cmp_le_u32 s%d, 8\ns_cbranch_scc1 L_fb_tile" % (sD, sD, sD))
        a.e("s_cmp_eq_u32 s%d, 1\ns_cbranch_scc1 L_fb_done" % sPass)
        a.e("s_mov_b32 s%d, 1" % sPass)
        a.e("v_mov_b32 v%d, v%d" % (vT2, vM))
        a.e("v_permlane32_swap_b32 v%d, v%d" % (vT2, vM))
        a.e("v_max_f32 v%d, v%d, v%d" % (vM, vM, vT2))
        a.e("s_branch L_fb_pass")
        a.e("L_fb_done:")
        self.bcast_hi(O + 12, vT2, vT1)
        a.e("s_branch L_att_ok")

    def type_b(self):
        a = self.a
        o = self.o
        steps = []
        for c in range(7):
            steps.append(dict(g=c, c=c, x=True, w=[(1, B_WK[c]), (2, B_WV[c])], tr=[False, False], acc=[ACC0, ACC1], gate=False, buf=WB + 32 * (c % 2)))
        QA = 224
        for c in range(7):
            steps.append(dict(g=7 + c, c=c, x=False, w=[(0, B_WQ[c])], tr=[True], acc=[QA], gate=True, buf=(96 if c % 2 == 0 else 48)))

        def setup_b():
            for i in range(2):
                a.e("s_mov_b32 s%d, 0x%x\ns_mov_b32 s%d, 0x%x\ns_mov_b32 s%d, 0x3f803f80" % (sL2E + i, f2u(LOG2E), sEPS + i, f2u(1e-6), sONE + i))
            a.e("s_mov_b32 s%d, 0x3f80\ns_mov_b32 s%d, 0x3f800000" % (sSEL, sSEL + 1))
            a.e("s_lshl_b32 s%d, s%d, 4\ns_add_u32 s%d, s%d, s%d\ns_lshl_b32 s%d, s%d, 11" % (sT1, sH, sT1, sT1, sRB, sT1, sT1))
            a.e("s_lshl_b32 s%d, s%d, 9\ns_add_u32 s%d, s%d, s%d\ns_add_u32 s%d, s%d, %d" % (sT2, sRT, sT1, sT1, sT2, sPo, sT1, WS_KVP))
            a.e("s_lshl_b32 s%d, s%d, 5\ns_lshl_b32 s%d, s%d, 3\ns_add_u32 s%d, s%d, s%d\ns_add_u32 s%d, s%d, s%d" % (sT1, sH, sT2, sRT, sT1, sT1, sT2, sT1, sT1, sRB))
            a.e("s_mul_i32 s%d, s%d, %d\ns_add_u32 s%d, s%d, %d" % (sT1, sT1, FS, sPf, sT1, FL_P))
            a.e("s_bitcmp1_b32 s%d, 0\ns_cselect_b32 s%d, %d, s%d\ns_cselect_b32 s%d, %d, s%d" % (sRT, sPo, OOB, sPo, sPf, OOB, sPf))
            a.e("s_and_b32 s%d, s%d, 1\ns_lshr_b32 s%d, s%d, 1" % (sT2, sRT, sT3, sRT))
            a.e("s_lshl_b32 s%d, s%d, 1\ns_add_u32 s%d, s%d, s%d\ns_lshl_b32 s%d, s%d, 1\ns_add_u32 s%d, s%d, s%d" % (sT1, sH, sT1, sT1, sT2, sT1, sT1, sT1, sT1, sT3))
            a.e("s_mul_i32 s%d, s%d, %d\ns_add_u32 s%d, s%d, %d" % (sT1, sT1, 8 * FS, sPF, sT1, FL_P))
            a.e("s_lshl_b32 s%d, s%d, 15\ns_lshl_b32 s%d, s%d, 14\ns_add_u32 s%d, s%d, s%d" % (sT1, sH, sT3, sT3, sT1, sT1, sT3))
            a.e("s_lshl_b32 s%d, s%d, 10\ns_add_u32 s%d, s%d, s%d\ns_add_u32 s%d, s%d, %d" % (sT2, sT2, sT1, sT1, sT2, sGo, sT1, WS_KVP))
            a.e("v_and_b32 v%d, 7, v%d\nv_mul_u32_u24 v%d, %d, v%d" % (vPA, vLane, vPA, FS, vPA))
            a.e("s_lshl_b32 s%d, s%d, 12\ns_add_u32 s%d, s%d, %d\nv_add_u32 v%d, s%d, v%d" % (sT1, sW, sT1, sT1, B_KVS, vKW, sT1, vL16))
            a.e("s_lshl_b32 s%d, s%d, 14\ns_lshl_b32 s%d, s%d, 10\ns_add_u32 s%d, s%d, s%d\ns_add_u32 s%d, s%d, %d" % (sT1, sE, sT2, sRT, sT1, sT1, sT2, sT1, sT1, B_KVS))
            a.e("v_add_u32 v%d, s%d, v%d" % (vKR, sT1, vL16))
            a.e("s_lshl_b32 s%d, s%d, 12\ns_add_u32 s%d, s%d, %d\nv_add_u32 v%d, s%d, v%d" % (sT1, sE, sT1, sT1, B_EXS, vXR, sT1, vL16))
            a.e("s_lshl_b32 s%d, s%d, 10\nv_add_u32 v%d, s%d, v%d" % (sT2, sRT, vXW, sT2, vXR))

        vSel = 64

        def setup_sel():
            for d in range(4):
                a.e("v_mov_b32 v%d, 0" % (vSel + d))
            for jj in range(8):
                m = (jj & 3) + 8 * (jj >> 2)
                a.e("s_mov_b32 exec_lo, %d\ns_mov_b32 exec_hi, %d\nv_mov_b32 v%d, s%d\ns_mov_b64 exec, -1" % (1 << m, 16 << m, vSel + (jj >> 1), sSEL + (jj & 1)))

        def epi_kv():
            self.stamp(1)
            VP = WB + 24
            self.pack(ACC1, VP)
            self.ones_col(VP, "s[%d:%d]" % (sONE, sONE + 1))
            self.phi(ACC0, WB + 16)
            self.pack(ACC0, ACC0)
            a.e("v_mfma_f32_32x32x16_bf16 %s, %s, %s, 0" % (vr(ACC1, 16), vr(ACC0, 4), vr(VP, 4)))
            a.e("v_mfma_f32_32x32x16_bf16 %s, %s, %s, %s" % (vr(ACC1, 16), vr(ACC0 + 4, 4), vr(VP + 4, 4), vr(ACC1, 16)))
            for q in range(4):
                a.ds("ds_write_b128 v%d, %s offset:%d" % (vKW, vr(ACC1 + 4 * q, 4), 1024 * q), "w")

        def red_kv():
            skip = a.lab("Lnored")
            a.begin()
            a.e("s_bitcmp1_b32 s%d, 0\ns_cbranch_scc1 %s" % (sRT, skip))
            for j in range(8):
                a.raw_ds = None
                a.e("ds_read_b128 %s, v%d offset:%d" % (vr(ACC0 + 4 * j, 4), vKR, 4096 * (j >> 1) + 1024 * (j & 1)))
            a.e("s_waitcnt lgkmcnt(0)")
            for i in range(0, 8, 2):
                a.e("v_pk_add_f32 %s, %s, %s" % (vr(ACC0 + i, 2), vr(ACC0 + i, 2), vr(ACC0 + 8 + i, 2)))
                a.e("v_pk_add_f32 %s, %s, %s" % (vr(ACC0 + 16 + i, 2), vr(ACC0 + 16 + i, 2), vr(ACC0 + 24 + i, 2)))
            for i in range(0, 8, 2):
                a.e("v_pk_add_f32 %s, %s, %s" % (vr(ACC0 + i, 2), vr(ACC0 + i, 2), vr(ACC0 + 16 + i, 2)))
            for i in range(4):
                a.e("v_cvt_pk_bf16_f32 v%d, v%d, v%d" % (ACC0 + 8 + i, ACC0 + 2 * i, ACC0 + 2 * i + 1))
            a.e(skip + ":")
            a.vmem("buffer_store_dwordx4 %s, v%d, %s, s%d offen sc1" % (vr(ACC0 + 8, 4), vL16, sr(sWS), sPo), "stP")
            a.end()

        def flag_p():
            a.vm.wait("stP")
            self.set_flag(sPf)
            self.stamp(2)

        def wo1_part(lo, hi):
            def f():
                for i in range(lo, hi):
                    self.claim(WO1_LDS + i * 8192, 8192, 99)
                    self.wo_load(0, i)
            return f

        fills = {0: [(self.setup_scalar, 3), (setup_b, 6), (self.nonce_issue, 6)], 4: [(self.setup_late, 6)], 5: [(self.gate_write, 6)],
                 7: [(red_kv, o["B_fp"]), (setup_sel, None), (self.setup_p3v, None)]}
        blocks = {}
        def add(b, f):
            blocks.setdefault(b, []).append(f)
        add(6, self.nonce_take)
        add(7, epi_kv)
        add(o["B_fp"], flag_p)
        bw = o["B_wo"]
        add(bw, wo1_part(0, 1)); add(bw + 1, wo1_part(1, 3)); add(bw + 2, wo1_part(3, 5)); add(bw + 3, wo1_part(5, 7))
        add(o["B_pp"], lambda: self.vpoll_issue(vP1, vPA, sPF, "pP"))
        self.run_steps(steps, o["LB"], o["LBx"], o["barB"], [1, 2, 3, 4], self.load_gate, fills, blocks)
        self.stamp(3)
        if o.get("nofill"):
            a.e("s_branch L_done")
        self.barrier()
        self.vpoll_check(vP1, vPA, sPF, "pP")
        self.stamp(4)
        G = 112
        for i in range(8):
            if i % 2 == 0 and i:
                a.e("s_add_u32 s%d, s%d, 4096" % (sGo, sGo))
            a.vmem("buffer_load_dwordx4 %s, v%d, %s, s%d offen offset:%d sc1" % (vr(G + 4 * i, 4), vL16, sr(sWS), sGo, 2048 * (i % 2)), ("g", i))
        self.gate_from(QA + 12)
        self.phi(QA, WB)
        self.pack(QA, ACC1)
        self.zero_pad_tr(ACC1)
        a.e("v_sub_f32 v%d, 1.0, v%d" % (vGate, vGate))
        for i in range(7):
            self.wo_load(1, i)
        for k in range(8):
            if k % 2 == 0:
                a.vm.wait(("g", k + 1))
            a.e("v_mfma_f32_32x32x16_bf16 %s, %s, %s, %s" % (vr(ACC0, 16), vr(vSel, 4), vr(G + 4 * k, 4), "0" if k == 0 else vr(ACC0, 16)))
        for i in range(4):
            a.e("v_cvt_pk_bf16_f32 v%d, v%d, v%d" % (ACC0 + 8 + i, ACC0 + 2 * i, ACC0 + 2 * i + 1))
        self.stamp(43)
        a.ds("ds_write_b128 v%d, %s" % (vXW, vr(ACC0 + 8, 4)), "w")
        a.lg.wait_all()
        self.barrier()
        self.stamp(44)
        for k in range(4):
            a.ds("ds_read_b128 %s, v%d offset:%d" % (vr(G + 4 * k, 4), vXR, 1024 * k), ("kf", k))
        for k in range(4):
            if k % 2 == 0:
                a.lg.wait(("kf", k + 1))
            a.e("v_mfma_f32_32x32x16_bf16 %s, %s, %s, %s" % (vr(ACC0, 16), vr(G + 4 * k, 4), vr(ACC1 + 4 * (k & 1), 4), "0" if k == 0 else vr(ACC0, 16)))
        self.bcast_hi(ACC0 + 12, vT2, vT1)
        a.e("v_add_f32 v%d, s%d, v%d" % (vT2, sEPS, vT2))
        a.e("v_rcp_f32 v%d, v%d" % (vT2, vT2))
        a.e("v_mul_f32 v%d, v%d, v%d" % (vT2, vT2, vGate))
        self.scale16(ACC0, vT2)
        self.pack(ACC0, PK2)
        self.zero_pad_tr(PK2)
        self.store2k(PK2, sOo, "stO")
        self.stamp(7)
        a.vm.wait("wo2")
        self.barrier()

    def p3(self):
        a = self.a
        a.e("L_p3:")

        def part(br, i, waits=True):
            if waits:
                a.vm.wait(("o", br, i))
            for ct in range(2):
                d = WF + 4 * ((br * 8 + i) * 2 + ct)
                acc = ACC0 + 16 * ct
                a.e("v_mfma_f32_32x32x16_bf16 %s, %s, %s, %s" % (vr(acc, 16), vr(d, 4), vr(OF[br] + 4 * i, 4), "0" if (br == 0 and i == 0) else vr(acc, 16)))

        a.vm.clear(); a.lg.clear()
        self.stamp(48)
        slow = a.lab("Lslow"); have = a.lab("Lhave")
        for i in range(self.o["pre"]):
            self.wo_read(0, i)
        a.e("s_cmp_eq_u32 s%d, 1\ns_cbranch_scc0 %s" % (sOBd, slow))
        a.e("s_waitcnt vmcnt(8)")
        self.set_flag(sFO)
        self.stamp(8)
        a.e(have + ":")

        def slow_path():
            a.e(slow + ":")
            a.e("s_waitcnt vmcnt(0)")
            self.set_flag(sFO)
            self.stamp(8)
            self.poll4_issue(sFB)
            a.e("s_branch " + have)
        self.out_of_line.append(slow_path)
        for i in range(self.o["pre"], 8):
            self.wo_read(0, i)
        s2 = a.lab("Lslow2"); h2 = a.lab("Lhave2")
        a.e("s_cmp_eq_u32 s%d, 1\ns_cbranch_scc0 %s" % (sOBd, s2))
        a.e(h2 + ":")

        def slow2():
            got = a.lab("Lgot")
            a.e(s2 + ":")
            self.poll4_test()
            a.e("s_cbranch_scc1 " + h2)
            self.o_loads(0)
            a.e("s_mov_b32 s%d, 1\ns_branch %s" % (sOBd, h2))
        self.out_of_line.append(slow2)
        for i in range(8):
            if i == 4:
                self.wo_read(1, 4, (0,))
                for r in range(4):
                    a.e("v_subrev_u32 v%d, s%d, v%d" % (vW2 + r, sD2, vW2 + r))
                self.wo_read(1, 4, (1,))
            else:
                self.wo_read(1, i)
        self.stamp(49)
        s3 = a.lab("Lslow3"); h3 = a.lab("Lhave3")
        a.e("s_cmp_eq_u32 s%d, 1\ns_cbranch_scc0 %s" % (sOBd, s3))
        a.e(h3 + ":")

        def slow3():
            a.e(s3 + ":")
            self.poll4(sFB)
            self.o_loads(0)
            a.e("s_branch " + h3)
        self.out_of_line.append(slow3)
        self.stamp(10)
        late = a.lab("Llate"); late2 = a.lab("Llate2"); pa = a.lab("Lpa")
        self.poll4_issue(sFA)
        self.poll4_test()
        a.e("s_cbranch_scc1 " + late)
        self.stamp(12)
        a.vm.clear()
        self.o_loads(1)
        a.e("s_waitcnt vmcnt(8)")
        for i in range(8):
            part(0, i)
        a.e(pa + ":")

        def late_path():
            a.e(late + ":")
            a.e("s_waitcnt vmcnt(0)")
            self.poll4_issue(sFA)
            for i in range(4):
                part(0, i, False)
            self.poll4_test()
            a.e("s_cbranch_scc1 " + late2)
            self.stamp(12)
            self.o_loads(1)
            for i in range(4, 8):
                part(0, i, False)
            a.e("s_branch " + pa)
            a.e(late2 + ":")
            for i in range(4, 8):
                part(0, i, False)
            self.poll4(sFA)
            self.stamp(12)
            self.o_loads(1)
            a.e("s_branch " + pa)
        self.out_of_line.append(late_path)
        self.stamp(11)
        for i in range(8):
            part(1, i)
        self.stamp(13)
        for b in range(1, 4):
            for g in range(2):
                a.ds("ds_write_b128 v%d, %s offset:%d" % (vRD + b, vr(ACC0 + 8 * b + 4 * g, 4), (b - 1) * 2048 + g * 1024), "w")
        a.lg.wait_all()
        self.stamp(53)
        self.barrier()
        self.stamp(54)
        for k in range(6):
            a.ds("ds_read_b128 %s, v%d offset:%d" % (vr(48 + 4 * k, 4), vRD, k * 1024), ("rd", k))
        for k in range(6):
            if k % 2 == 0:
                a.lg.wait(("rd", k + 1))
            for i in (0, 2):
                r = ACC0 + 4 * (k & 1) + i
                a.e("v_pk_add_f32 %s, %s, %s" % (vr(r, 2), vr(r, 2), vr(48 + 4 * k + i, 2)))
        for i in range(4):
            a.e("v_cvt_pk_bf16_f32 v%d, v%d, v%d" % (72 + i, ACC0 + 2 * i, ACC0 + 2 * i + 1))
        a.e("v_permlane32_swap_b32 v72, v74\nv_permlane32_swap_b32 v73, v75")
        a.vmem("buffer_store_dwordx4 v[72:75], v%d, %s, s%d offen" % (vOA, sr(sOUT), sOut))
        self.stamp(14)

    def build(self):
        a = self.a
        amp = self.o.get("amp")
        a.e("; @launch grid=(256,1,1) block=(512,1,1) lds=163840")
        a.e('.amdgcn_target "amdgcn-amd-amdhsa--gfx950"')
        a.e(".text\n.globl %s\n.p2align 8\n.type %s,@function\n%s:" % (NAME, NAME, NAME))
        if self.prof:
            a.e("s_memtime s[98:99]\ns_memrealtime s[96:97]")
        if amp:
            a.e("s_memtime s[98:99]" if amp[0] == "clk" else "s_memrealtime s[98:99]")
        a.e("s_cmp_ge_u32 s2, 256\ns_cbranch_scc1 L_end")
        a.e("s_load_dwordx16 s[4:19], s[0:1], 0\ns_load_dwordx4 s[20:23], s[0:1], 64")
        a.e("v_lshrrev_b32 v%d, 6, v0\nv_and_b32 v%d, 63, v0" % (vT, vLane))
        a.e("v_readfirstlane_b32 s%d, v%d" % (sW, vT))
        a.e("v_lshlrev_b32 v%d, 4, v%d" % (vL16, vLane))
        a.e("s_and_b32 s%d, s2, 3\ns_lshl_b32 s%d, s%d, 2\ns_lshr_b32 s%d, s2, 6\ns_add_u32 s%d, s%d, s%d" % (sT1, sT1, sT1, sRB, sRB, sRB, sT1))
        a.e("s_bfe_u32 s%d, s2, 0x10002\ns_lshl_b32 s%d, s%d, 2\ns_bfe_u32 s%d, s2, 0x20004\ns_add_u32 s%d, s%d, s%d" % (sT1, sT1, sT1, sHP, sHP, sHP, sT1))
        a.e("s_bfe_u32 s%d, s2, 0x10003" % sTY)
        a.e("s_and_b32 s%d, s%d, 3\ns_lshr_b32 s%d, s%d, 2\ns_lshl_b32 s%d, s%d, 10" % (sRT, sW, sE, sW, sL, sW))
        a.e("s_lshl_b32 s%d, s%d, 4\ns_add_u32 s%d, s%d, s%d\ns_mul_i32 s%d, s%d, %d" % (sXo, sRB, sXo, sXo, sW, sXo, sXo, 8 * 896))
        a.e("s_mul_i32 s%d, s%d, %d\ns_mul_i32 s%d, s%d, 112\ns_add_u32 s%d, s%d, s%d" % (sWo, sW, 8 * 2688, sT1, sHP, sWo, sWo, sT1))
        a.e("v_lshrrev_b32 v5, 3, v%d\nv_and_b32 v6, 7, v%d" % (vLane, vLane))
        a.e("s_and_b32 s%d, s%d, 1\ns_lshl_b32 s%d, s%d, 2" % (sT1, sW, sT1, sT1))
        a.e("v_lshrrev_b32 v7, 1, v5\nv_add_u32 v7, s%d, v7\nv_xor_b32 v7, v7, v6" % sT1)
        a.e("v_mul_u32_u24 v%d, 896, v5\nv_lshl_add_u32 v%d, v7, 4, v%d" % (vOX, vOX, vOX))
        a.e("v_and_b32 v7, 2, v5\nv_lshlrev_b32 v7, 1, v7\nv_xor_b32 v7, v7, v6")
        a.e("v_mul_u32_u24 v%d, 2688, v5\nv_lshl_add_u32 v%d, v7, 4, v%d" % (vOW, vOW, vOW))
        a.e("s_waitcnt lgkmcnt(0)")
        if self.prof:
            a.e("s_mov_b32 s3, s98\nv_mov_b32 v255, 0\nv_writelane_b32 v255, s96, 17")
        if amp:
            a.e("s_mov_b32 s3, s98")
        self.srd(sX, 4, 2048 * 896)
        a.e("s_cmp_eq_u32 s%d, 0\ns_cselect_b32 s%d, s6, s12\ns_cselect_b32 s%d, s7, s13\ns_mov_b32 s%d, %d\ns_mov_b32 s%d, 0x20000" % (sTY, sWm, sWm + 1, sWm + 2, 448 * 2688, sWm + 3))
        a.e("s_cmp_eq_u32 s%d, 0\ns_cbranch_scc0 L_typeB" % sTY)
        a.vm.clear(); a.lg.clear()
        self.type_a()
        a.e("L_typeB:")
        a.vm.clear(); a.lg.clear()
        self.type_b()
        self.p3()
        a.e("L_done:")
        if self.prof:
            a.e("s_lshl_b32 s%d, s2, 3\ns_add_u32 s%d, s%d, s%d\ns_lshl_b32 s%d, s%d, 8\ns_add_u32 s%d, s%d, %d" % (sT1, sT1, sT1, sW, sT1, sT1, sT1, sT1, WS_PROF))
            a.e("s_waitcnt vmcnt(0)")
            self.stamp(15)
            a.e("s_memrealtime s[100:101]\ns_waitcnt lgkmcnt(0)\nv_writelane_b32 v255, s100, 16")
            a.e("v_lshlrev_b32 v%d, 2, v%d" % (vT, vLane))
            a.e("buffer_store_dword v255, v%d, %s, s%d offen" % (vT, sr(sWS), sT1))
        if amp:
            kind, wg, mult = amp
            a.e("s_cmp_lg_u32 s2, %d\ns_cbranch_scc1 L_end\ns_cmp_lg_u32 s%d, 0\ns_cbranch_scc1 L_end" % (wg, sW))
            a.e("s_waitcnt vmcnt(0)")
            a.e("s_memtime s[98:99]" if kind == "clk" else "s_memrealtime s[98:99]")
            a.e("s_memrealtime s[96:97]\ns_waitcnt lgkmcnt(0)\ns_sub_u32 s98, s98, s3\ns_mul_i32 s98, s98, %d" % mult)
            a.e("L_amp:\ns_sleep 8\ns_memrealtime s[94:95]\ns_waitcnt lgkmcnt(0)\ns_sub_u32 s94, s94, s96\ns_cmp_lt_u32 s94, s98\ns_cbranch_scc1 L_amp")
        a.e("L_end:\ns_endpgm")
        for f in self.out_of_line:
            f()
        a.e('.section .rodata,"a"\n.p2align 6\n.amdhsa_kernel %s' % NAME)
        a.e("  .amdhsa_next_free_vgpr 256\n  .amdhsa_next_free_sgpr 102\n  .amdhsa_accum_offset 256\n  .amdhsa_group_segment_fixed_size 0\n  .amdhsa_kernarg_size 80\n  .amdhsa_user_sgpr_count 2\n  .amdhsa_user_sgpr_kernarg_segment_ptr 1\n  .amdhsa_system_sgpr_workgroup_id_x 1\n.end_amdhsa_kernel")
        text, n = a.finish()
        return text


if __name__ == "__main__":
    prof = "prof" in sys.argv[2:]
    opts = {}
    for x in sys.argv[2:]:
        if "=" in x:
            k, v = x.split("=", 1)
            opts[k] = eval(v)
    open(sys.argv[1], "w").write(Gen(prof=prof, opts=opts).build())
```

```python
import sys, struct, math
from asmlib import Asm

NAME = "gated_mix__sliding_block__linear_attn_block__prompt_kernel"


def f2u(x):
    return struct.unpack("<I", struct.pack("<f", x))[0]


LOG2E = 1.4426950408889634
NEG = f2u(-3.0e38)
WS_K = 0
WS_V = 2 << 20
WS_OA = 4 << 20
WS_OB = 6 << 20
WS_KVP = 8 << 20
FS = 128
WS_FL = 9 << 20
FL_K = WS_FL
FL_V = FL_K + 1024 * FS
FL_OA = FL_V + 1024 * FS
FL_OB = FL_OA + 1024 * FS
FL_P = FL_OB + 1024 * FS
WS_SIZE = 10 << 20
WS_PROF = 12 << 20
OOB = 0x70000000
SPIN_MAX = 1 << 16

sX, sWm, sWS, sG, sWO1, sWO2, sOUT = 24, 28, 32, 36, 40, 44, 48
sT0, sT1, sT2, sT3 = 52, 53, 54, 55
sW, sRT, sE, sRB, sHP, sTY, sH, sN, sGT = 56, 57, 58, 59, 60, 61, 62, 63, 64
sXo, sWo, sL = 65, 66, 67
sT4, sT5 = 68, 69
sMASK = 70
sKo, sVo, sKf, sVf = 4, 5, 6, 7
sPo, sPf, sPF, sGo = 4, 5, 6, 7
sOo, sFO = 8, 9
sHK, sHV, sHFk, sHFv, sHL, sHok = 10, 11, 12, 13, 14, 15
sOD = [16, 18]
sFA = 20
sFB = 24
sWoP, sIdle = 26, 27
sPD = 28
sOBf, sOut, sGM = 36, 37, 38
sD2 = 59
sUP = 60
sOBd = 65
sL2E, sEPS, sSEL, sONE = 70, 72, 74, 76

vLane, vL16, vOX, vOW = 1, 2, 3, 4
vXA = 5
vWA = 9
vGV, vGZ, vGA, vT = 12, 13, 14, 15
ACC0, ACC1 = 16, 32
WB = 48
vW1, vW2, vRD, vOA = 80, 84, 88, 92
MK, vOwn, vKA, vVA, vS, vS2, vOne = 94, 102, 103, 104, 106, 108, 110
XR = 112
PK = 224
PK2 = 232
vGate = 240
vT1, vT2, vT3, vT4 = 241, 242, 243, 244
vNV, vNZ = 246, 247
vPA, vP1, vP2 = 248, 249, 250
vLG, vPB = 251, 253
vKW, vKR, vL8, vXW, vXR = 245, 250, 251, 252, 253
vF0 = 254
WF = 94
OF = [48, 222]


def XS(c): return 16384 * c
RING = 114688
A_WK = [RING + 8192 * c for c in range(6)] + [RING]
A_WV = [0, 8192, 24576, 32768, RING + 8192, RING + 16384, RING + 24576]
A_WQ = [49152, 57344, 73728, 81920, 98304, 106496, RING + 32768]
KAREA, VAREA = 0, 49152
B_WK = [RING + 16384 * (c % 3) for c in range(7)]
B_WV = [x + 8192 for x in B_WK]
B_WQ = [8192 * c for c in range(7)]
B_KVS = 65536
B_EXS = 65536
WO1_LDS = 106496
WO2_HEAD = 98304
RED = 49152


def wo2_slot(i):
    return WO2_HEAD if i == 0 else (i - 1) * 8192


def vr(b, n):
    return "v[%d:%d]" % (b, b + n - 1)


def sr(b, n=4):
    return "s[%d:%d]" % (b, b + n - 1)


class Gen:
    def __init__(self, prof=False, opts=None):
        self.a = Asm()
        self.prof = prof
        self.o = dict(
            LA=[3, 3, 3, 3, 3, 4, 4] + [4] * 14, LB=[2] * 5 + [3, 4] + [5] * 7,
            barA=[0, 1, 2, 3, 4, 5, 6, 7, 9, 11, 13, 14, 16, 18, 20], barB=[0, 1, 2, 3, 4, 5, 6, 7, 8, 10, 12],
            A_fk=11, A_fv=18, A_pk=16, A_hk=18, A_pv=20, A_ob=2, B_fp=10, B_wo=9, B_pp=12, ahead=3, pre=1, fill=8, fill1=14, spread=0, dmapos=1, LAx=3, LBx=2)
        if opts:
            self.o.update(opts)
        self.vp = 255
        self.out_of_line = []

    def srd(self, d, b, size):
        self.a.e("s_mov_b32 s%d, s%d\ns_mov_b32 s%d, s%d\ns_mov_b32 s%d, %d\ns_mov_b32 s%d, 0x20000" % (d, b, d + 1, b + 1, d + 2, size, d + 3))

    def stamp(self, idx):
        amp = self.o.get("amp")
        if amp and len(amp) > 3 and amp[3] == idx:
            a = self.a
            a.begin()
            a.e("s_memtime vcc" if amp[0] == "clk" else "s_memrealtime vcc")
            a.lg.wait_all()
            a.e("v_mov_b32 v255, vcc_lo")
            a.end()
            return
        if not self.prof:
            return
        a = self.a
        a.begin()
        a.e("s_memtime vcc")
        a.lg.wait_all()
        a.e("s_sub_u32 vcc_lo, vcc_lo, s3")
        a.e("v_writelane_b32 v%d, vcc_lo, %d" % (self.vp, idx))
        a.end()

    def dma(self, voff, srd, sbase, imm, lds, tag, slds=sL, flags=""):
        a = self.a
        a.begin()
        a.e("s_add_u32 m0, s%d, %d" % (slds, lds))
        a.e("s_add_u32 s%d, s%d, %d" % (sT0, sbase, imm))
        a.vmem("buffer_load_dwordx4 v%d, %s, s%d offen %slds" % (voff, sr(srd), sT0, flags), tag)
        a.end()

    def barrier(self):
        self.a.e("s_barrier")

    def set_flag(self, soff):
        self.a.vmem("buffer_store_dword v%d, v%d, %s, s%d offen sc1" % (vNV, vF0, sr(sWS), soff), "flag")

    def poll4_issue(self, base):
        for i in range(4):
            self.a.e("s_load_dword s%d, s[%d:%d], %d glc" % (sPD + i, base, base + 1, i * FS))

    def poll4_test(self):
        a = self.a
        a.lg.wait_all()
        a.e("s_xor_b32 s%d, s%d, s%d\ns_xor_b32 s%d, s%d, s%d" % (sPD, sPD, sPD + 1, sPD + 2, sPD + 2, sPD + 3))
        a.e("s_xor_b32 s%d, s%d, s%d\ns_xor_b32 s%d, s%d, s%d" % (sPD + 1, sPD + 1, sN, sPD + 3, sPD + 3, sN))
        a.e("s_or_b64 s[%d:%d], s[%d:%d], s[%d:%d]" % (sPD, sPD + 1, sPD, sPD + 1, sPD + 2, sPD + 3))

    def poll4(self, base):
        a = self.a
        lab = a.lab("Lpoll"); done = a.lab("Lpolld")
        a.e("s_mov_b32 s%d, 0" % sT5)
        a.e(lab + ":")
        self.poll4_issue(base)
        a.e("s_add_u32 s%d, s%d, 1" % (sT5, sT5))
        a.e("s_cmp_gt_u32 s%d, %d" % (sT5, SPIN_MAX))
        a.e("s_waitcnt lgkmcnt(0)")
        a.e("s_cbranch_scc1 " + done)
        self.poll4_test()
        a.e("s_cbranch_scc1 " + lab)
        a.e(done + ":")

    def vpoll_issue(self, vdst, vaddr, soff, tag):
        self.a.vmem("buffer_load_dword v%d, v%d, %s, s%d offen sc1" % (vdst, vaddr, sr(sWS), soff), tag)

    def vpoll_check(self, vdst, vaddr, soff, tag, sok=None):
        a = self.a
        lab = a.lab("Lvp"); back = a.lab("Lvpb")
        a.vm.wait(tag)
        a.e("v_cmp_ne_u32 vcc, v%d, v%d" % (vNV, vdst))
        a.e("s_cbranch_vccnz " + lab)
        a.e(back + ":")

        def slow():
            loop = a.lab("Lvpl")
            a.e(lab + ":")
            if sok is not None:
                a.e("s_cmp_eq_u32 s%d, 0\ns_cbranch_scc1 %s" % (sok, back))
            a.e("s_mov_b32 s%d, 0" % sT5)
            a.e(loop + ":")
            a.e("buffer_load_dword v%d, v%d, %s, s%d offen sc1" % (vdst, vaddr, sr(sWS), soff))
            a.e("s_add_u32 s%d, s%d, 1\ns_cmp_gt_u32 s%d, %d" % (sT5, sT5, sT5, SPIN_MAX))
            a.e("s_waitcnt vmcnt(0)")
            a.e("s_cbranch_scc1 " + back)
            a.e("v_cmp_ne_u32 vcc, v%d, v%d" % (vNV, vdst))
            a.e("s_cbranch_vccnz " + loop)
            a.e("s_branch " + back)
        self.out_of_line.append(slow)

    def waddr(self, slot):
        k = slot >> 16
        return vWA + k, slot - (k << 16)

    def step_loads(self, st, part):
        a = self.a
        g = st["g"]; c = st["c"]
        if part == "x":
            if not st["x"]:
                return
            self.claim(XS(c), 16384, g)
            self.dma(vOX, sX, sXo, c * 128, XS(c), ("ld", g))
            self.dma(vOX, sX, sXo, c * 128 + 64 * 896, XS(c) + 8192, ("ld", g))
            return
        for (mat, slot) in st["w"]:
            self.claim(slot, 8192, g)
            if st["gate"]:
                a.e("s_mov_b64 exec, s[%d:%d]" % (sGM, sGM + 1))
            if self.o.get("fastld") and g >= 7:
                self.dma(vL16, sWm, sL, 0, slot, ("ld", g))
            else:
                self.dma(vOW, sWm, sWo, c * 64 * 2688 + mat * 896, slot, ("ld", g))
            if st["gate"]:
                a.e("s_mov_b64 exec, -1")

    def gate_write(self):
        a = self.a
        a.begin()
        a.vm.wait("gate")
        a.e("s_mov_b32 exec_hi, 0xffffff")
        a.ds("ds_write_b64 v%d, v[%d:%d]" % (vGA, vGV, vGZ), "w")
        a.e("s_mov_b32 exec_hi, -1")
        a.end()

    def claim(self, lo, n, g):
        for (l2, n2, g2) in self.claims:
            if lo < l2 + n2 and l2 < lo + n:
                assert g2 < self.lastbar, ("LDS slot reuse", lo, n, g, l2, g2, self.lastbar)
        self.claims = [x for x in self.claims if not (lo <= x[0] and x[0] + x[1] <= lo + n)]
        self.claims.append((lo, n, g))

    def step_reads(self, st, kks):
        a = self.a
        g = st["g"]; c = st["c"]
        buf = st["buf"]
        if st["x"] and c == 4 and 0 in kks:
            for kk in range(4):
                a.e("v_add_u32 v%d, 0x10000, v%d" % (vXA + kk, vXA + kk))
        for kk in kks:
            if st["x"]:
                off = XS(c) - (65536 if c >= 4 else 0)
                a.ds("ds_read_b128 %s, v%d offset:%d" % (vr(XR + 4 * (4 * c + kk), 4), vXA + kk, off), ("r", g, kk))
            for mi, (mat, slot) in enumerate(st["w"]):
                reg, off = self.waddr(slot)
                for t in range(2):
                    a.ds("ds_read_b64_tr_b16 %s, v%d offset:%d" % (vr(buf + mi * 16 + 4 * kk + 2 * t, 2), reg, off + (16 * kk + 4 * t) * 128), ("r", g, kk))

    def step_mfma(self, st, kk):
        a = self.a
        g = st["g"]; c = st["c"]
        buf = st["buf"]
        if kk % 2 == 0:
            a.lg.wait(("r", g, kk + 1))
        for mi in range(len(st["w"])):
            acc = st["acc"][mi]
            xf = vr(XR + 4 * (4 * c + kk), 4); wf = vr(buf + mi * 16 + 4 * kk, 4)
            cin = "0" if (c == 0 and kk == 0) else vr(acc, 16)
            if st["tr"][mi]:
                a.e("v_mfma_f32_32x32x16_bf16 %s, %s, %s, %s" % (vr(acc, 16), wf, xf, cin))
            else:
                a.e("v_mfma_f32_32x32x16_bf16 %s, %s, %s, %s" % (vr(acc, 16), xf, wf, cin))

    def run_steps(self, steps, look, lookx, bars, strict, pro, fills, blocks):
        a = self.a
        n = len(steps)
        if self.o.get("nofill"):
            fills = {}; blocks = {}
            if self.o["nofill"] == 2:
                for st in steps: st["gate"] = False
        issued = [0]
        self.claims = []; self.lastbar = -1
        queue = []

        issx = [0]

        def issue_upto(k, kx):
            while issued[0] <= min(k, n - 1) or issx[0] <= min(kx, 6):
                if issx[0] <= min(kx, 6) and (issx[0] <= issued[0] or issued[0] > min(k, n - 1)):
                    self.step_loads(steps[issx[0]], "x")
                    issx[0] += 1
                else:
                    self.step_loads(steps[issued[0]], "w")
                    issued[0] += 1

        def weave(budget):
            if queue:
                queue[0][2] = True
                a.play(queue[0][0], budget)
                if not queue[0][0]:
                    queue.pop(0)

        issue_upto(look[0] - 1, lookx - 1)
        pro()
        F = self.o["fill"]
        for b in range(n + 1):
            if b in bars:
                while any(q[1] is not None and q[1] < b for q in queue):
                    weave(None)
                nxt = min([x for x in bars if x > b] + [n])
                assert issued[0] >= nxt, ("lookahead too short", b)
                a.vm.wait(("ld", nxt - 1))
                if b in strict:
                    a.lg.wait_all()
                else:
                    a.lg.wait("w")
                self.barrier()
                self.lastbar = b if b in strict else b - 1
            if self.o.get("stepstamp") and b < n:
                self.stamp(20 + b)
            for kk in range(4):
                if b < n:
                    self.step_reads(steps[b], [kk])
                if b:
                    self.step_mfma(steps[b - 1], kk)
                if kk == self.o["dmapos"]:
                    issue_upto(b + look[min(b, n - 1)], b + lookx)
                else:
                    weave(F if b > 7 else self.o["fill1"])
            for (f, d) in fills.get(b, []):
                queue.append([a.record(f), d, False])
            if b in blocks:
                while queue and (queue[0][2] or any(q[1] is not None and q[1] <= b for q in queue)):
                    weave(None)
                for f in blocks[b]:
                    f()
        while queue:
            weave(None)

    def pack(self, acc, dst):
        for i in range(8):
            self.a.e("v_cvt_pk_bf16_f32 v%d, v%d, v%d" % (dst + i, acc + 2 * i, acc + 2 * i + 1))

    def zero_pad_tr(self, dst):
        for i in (6, 7):
            self.a.e("v_cndmask_b32 v%d, v%d, 0, s[%d:%d]" % (dst + i, dst + i, sUP, sUP + 1))

    def ones_col(self, dst, src):
        a = self.a
        a.begin()
        a.e("s_mov_b32 exec_lo, 0x10000000\ns_mov_b32 exec_hi, 0x10000000")
        for i in range(0, 8, 2):
            a.e("v_pk_mov_b32 %s, %s, %s op_sel:[0,1]" % (vr(dst + i, 2), src, src))
        a.e("s_mov_b64 exec, -1")
        a.end()

    def bcast_hi(self, src, dst, tmp):
        a = self.a
        a.e("v_mov_b32 v%d, v%d\nv_mov_b32 v%d, v%d" % (tmp, src, dst, src))
        a.e("v_permlane32_swap_b32 v%d, v%d" % (tmp, dst))

    def phi(self, acc, T):
        a = self.a
        for r in range(0, 16, 8):
            for i in range(0, 8, 2):
                a.e("v_pk_mul_f32 %s, %s, s[%d:%d]" % (vr(T + i, 2), vr(acc + r + i, 2), sL2E, sL2E + 1))
            for i in range(8):
                a.e("v_exp_f32 v%d, v%d" % (T + i, T + i))
            for i in range(0, 8, 2):
                a.e("v_pk_add_f32 %s, %s, 1.0 op_sel_hi:[1,0]" % (vr(acc + r + i, 2), vr(acc + r + i, 2)))
            for i in range(8):
                a.e("v_med3_f32 v%d, v%d, v%d, 1.0" % (acc + r + i, T + i, acc + r + i))
            for i in range(0, 8, 2):
                a.e("v_pk_add_f32 %s, %s, s[%d:%d]" % (vr(acc + r + i, 2), vr(acc + r + i, 2), sEPS, sEPS + 1))

    def scale16(self, acc, vs):
        a = self.a
        a.e("v_mov_b32 v%d, v%d" % (vs + 1, vs))
        for r in range(0, 16, 2):
            a.e("v_pk_mul_f32 %s, %s, %s" % (vr(acc + r, 2), vr(acc + r, 2), vr(vs, 2)))

    def gate_from(self, src):
        a = self.a
        self.bcast_hi(src, vGate, vT1)
        a.e("v_mul_f32 v%d, 0x%x, v%d" % (vGate, f2u(-LOG2E), vGate))
        a.e("v_exp_f32 v%d, v%d" % (vGate, vGate))
        a.e("v_add_f32 v%d, 1.0, v%d" % (vGate, vGate))
        a.e("v_rcp_f32 v%d, v%d" % (vGate, vGate))

    def store2k(self, src, sbase, tag):
        a = self.a
        a.vmem("buffer_store_dwordx4 %s, v%d, %s, s%d offen sc1" % (vr(src, 4), vL16, sr(sWS), sbase), tag)
        a.vmem("buffer_store_dwordx4 %s, v%d, %s, s%d offen offset:1024 sc1" % (vr(src + 4, 4), vL16, sr(sWS), sbase), tag)

    def nonce_issue(self):
        a = self.a
        a.e("v_mov_b32 v%d, 0" % vNZ)
        a.vmem("global_load_dword v%d, v%d, s[20:21] sc1" % (vNV, vNZ), "nonce")

    def nonce_take(self):
        a = self.a
        lab = a.lab("Lnon"); back = a.lab("Lnonb")
        a.vm.wait("nonce")
        a.e("v_cmp_eq_u32 vcc, 0, v%d" % vNV)
        a.e("s_cbranch_vccnz " + lab)
        a.e(back + ":")
        a.e("v_readfirstlane_b32 s%d, v%d" % (sN, vNV))
        a.e("s_add_u32 s%d, s%d, %d" % (sT1, sOBf, FL_OA - FL_OB))
        a.e("s_add_u32 s%d, s22, s%d\ns_addc_u32 s%d, s23, 0" % (sFA, sT1, sFA + 1))
        a.e("s_add_u32 s%d, s22, s%d\ns_addc_u32 s%d, s23, 0" % (sFB, sOBf, sFB + 1))

        def slow():
            loop = a.lab("Lnonl")
            a.e(lab + ":")
            a.e("s_mov_b32 s%d, 0" % sT5)
            a.e(loop + ":")
            a.e("global_load_dword v%d, v%d, s[20:21] sc1" % (vNV, vNZ))
            a.e("s_add_u32 s%d, s%d, 1\ns_cmp_gt_u32 s%d, %d" % (sT5, sT5, sT5, SPIN_MAX))
            a.e("s_waitcnt vmcnt(0)")
            a.e("s_cbranch_scc1 " + back)
            a.e("v_cmp_eq_u32 vcc, 0, v%d" % vNV)
            a.e("s_cbranch_vccnz " + loop)
            a.e("s_branch " + back)
        self.out_of_line.append(slow)

    def load_gate(self):
        a = self.a
        a.e("s_lshl_b32 s%d, s%d, 1\ns_add_u32 s%d, s%d, s%d" % (sH, sHP, sH, sH, sE))
        a.e("s_lshl_b32 s%d, s%d, 2\ns_add_u32 s%d, s%d, s%d" % (sGT, sRB, sGT, sGT, sRT))
        a.e("v_and_b32 v9, 31, v%d\nv_lshrrev_b32 v10, 5, v%d\nv_bfe_u32 v11, v%d, 1, 3" % (vLane, vLane, vLane))
        a.e("s_lshl_b32 s%d, s%d, 12" % (sT1, sRT))
        a.e("v_lshl_add_u32 v9, v9, 7, s%d" % sT1)
        for kk in range(4):
            a.e("v_add_u32 v%d, %d, v10\nv_xor_b32 v%d, v%d, v11\nv_lshl_add_u32 v%d, v%d, 4, v9" % (vT, 2 * kk, vT, vT, vXA + kk, vT))
        a.e("v_bfe_u32 v%d, v%d, 4, 1\nv_and_b32 v%d, 3, v%d" % (vT1, vLane, vT2, vLane))
        a.e("v_lshlrev_b32 v%d, 5, v%d\nv_lshl_add_u32 v%d, v%d, 3, v%d" % (vT1, vT1, vT1, vT2, vT1))
        a.e("s_mul_i32 s%d, s%d, 56" % (sT1, sE))
        a.e("v_cmp_eq_u32 s[%d:%d], 56, v%d" % (sT2, sT2 + 1, vT1))
        a.e("v_add_u32 v%d, s%d, v%d\nv_mov_b32 v%d, 112" % (vT1, sT1, vT1, vT2))
        a.e("v_cndmask_b32 v%d, v%d, v%d, s[%d:%d]" % (vT1, vT1, vT2, sT2, sT2 + 1))
        a.e("v_bfe_u32 v%d, v%d, 2, 2\nv_and_b32 v%d, 2, v%d\nv_lshlrev_b32 v%d, 5, v%d\nv_xor_b32 v%d, v%d, v%d" % (vT2, vLane, vT3, vT2, vT3, vT3, vT1, vT1, vT3))
        a.e("v_lshl_add_u32 v%d, v10, 3, v%d\nv_lshl_add_u32 v%d, v%d, 7, v%d" % (vT2, vT2, vWA, vT2, vT1))
        a.e("v_add_u32 v%d, 0x10000, v%d\nv_add_u32 v%d, 0x20000, v%d" % (vWA + 1, vWA, vWA + 2, vWA))
        nn = a.lab("Lnn")
        a.e("s_or_b32 s%d, s2, s%d\ns_cmp_lg_u32 s%d, 0\ns_cbranch_scc1 %s" % (sT1, sW, sT1, nn))
        a.e("s_memrealtime s[%d:%d]\ns_waitcnt lgkmcnt(0)\ns_or_b32 s%d, s%d, 1" % (sT2, sT2 + 1, sT2, sT2))
        a.e("v_mov_b32 v%d, s%d\nv_mov_b32 v%d, 0" % (vT1, sT2, vT2))
        a.e("s_mov_b64 exec, 1\nglobal_store_dword v%d, v%d, s[20:21] sc1\ns_mov_b64 exec, -1" % (vT2, vT1))
        a.e(nn + ":")
        if self.o.get("wsoff"):
            a.e("s_add_u32 s22, s22, %d\ns_addc_u32 s23, s23, 0" % self.o["wsoff"])
        self.srd(sWS, 22, WS_SIZE if not self.prof else (16 << 20))
        if self.o.get("codepf"):
            n = self.o["codepf"]
            a.e("s_getpc_b64 s[%d:%d]" % (sT2, sT2 + 1))
            a.e("L_pc%d:" % a.uid)
            a.e("s_add_u32 s%d, s%d, %s-L_pc%d\ns_addc_u32 s%d, s%d, -1" % (sT2, sT2, NAME, a.uid, sT2 + 1, sT2 + 1))
            a.uid += 1
            a.e("s_lshr_b32 s%d, s2, 3\ns_lshl_b32 s%d, s%d, 3\ns_add_u32 s%d, s%d, s%d\ns_lshl_b32 s%d, s%d, 7" % (sT1, sT1, sT1, sT1, sT1, sW, sT1, sT1))
            a.e("s_min_u32 s%d, s%d, %d" % (sT1, sT1, n - 128))
            a.e("v_mov_b32 v%d, s%d" % (vT4, sT1))
            a.e("s_mov_b64 exec, 1")
            a.vmem("global_load_dword v0, v%d, s[%d:%d]" % (vT4, sT2, sT2 + 1), "pf")
            a.e("s_mov_b64 exec, -1")
        self.srd(sG, 16, 896)
        a.e("v_lshrrev_b32 v%d, 3, v%d\nv_lshlrev_b32 v%d, 7, v%d" % (vT2, vLane, vT, vT2))
        a.e("v_and_b32 v%d, 7, v%d\nv_lshl_add_u32 v%d, v%d, 1, v%d" % (vT1, vLane, vT, vT1, vT))
        a.e("s_lshl_b32 s%d, s%d, 4" % (sT0, sW))
        a.vmem("buffer_load_ushort v%d, v%d, %s, s%d offen" % (vGV, vT, sr(sG), sT0), "gate")

    def setup_scalar(self):
        a = self.a
        self.srd(sWO1, 14, 448 * 896)
        self.srd(sWO2, 8, 448 * 896)
        self.srd(sOUT, 18, 2048 * 896)
        a.e("s_mov_b32 s%d, 0xF7F77F7F\ns_mov_b32 s%d, 0xF7F77F7F" % (sGM, sGM + 1))
        a.e("s_lshr_b32 s%d, s2, 4\ns_cmp_eq_u32 s%d, 0\ns_cselect_b32 s%d, 16, 0\ns_add_u32 s%d, s%d, s%d" % (sT3, sTY, sT4, sT3, sT3, sT4))
        a.e("s_mul_i32 s%d, s%d, 37\ns_lshr_b32 s%d, s%d, 8" % (sT1, sT3, sT1, sT1))
        a.e("s_mul_i32 s%d, s%d, 7\ns_sub_u32 s%d, s%d, s%d" % (sT2, sT1, sT4, sT3, sT2))
        a.e("s_cmp_ge_u32 s%d, 28\ns_cselect_b32 s%d, 1, 0\ns_cselect_b32 s%d, 0, s%d\ns_cselect_b32 s%d, 0, s%d" % (sT3, sT5, sT4, sT4, sT1, sT1))
        a.e("s_and_b32 s%d, s2, 7\ns_lshl_b32 s%d, s%d, 2\ns_add_u32 s%d, s%d, s%d" % (sT2, sT2, sT2, sT1, sT1, sT2))
        a.e("s_lshl_b32 s%d, s%d, 1\ns_add_u32 s%d, s%d, s%d" % (sT1, sT1, sT1, sT1, sE))
        a.e("s_mul_i32 s%d, s%d, %d\ns_lshl_b32 s%d, s%d, 7\ns_add_u32 s%d, s%d, s%d" % (sOut, sT1, 32 * 896, sT4, sT4, sOut, sOut, sT4))
        a.e("s_lshl_b32 s%d, s%d, 5\ns_add_u32 s%d, s%d, s%d" % (sT2, sRT, sOut, sOut, sT2))
        a.e("s_lshl_b32 s%d, s%d, 2\ns_add_u32 s%d, s%d, s%d\ns_lshl_b32 s%d, s%d, 2" % (sT1, sT1, sT1, sT1, sRT, sT1, sT1))
        a.e("s_mul_i32 s%d, s%d, %d\ns_add_u32 s%d, s%d, %d" % (sOBf, sT1, FS, sOBf, sOBf, FL_OB))
        a.e("s_lshl_b32 s%d, s%d, 11" % (sT1, sT1))
        for br, wsb in enumerate((WS_OB, WS_OA)):
            a.e("s_add_u32 s%d, s%d, %d\ns_add_u32 s%d, s%d, %d" % (sOD[br], sT1, wsb, sOD[br] + 1, sT1, wsb + 4096))
        a.e("s_mul_i32 s%d, s%d, %d\ns_add_u32 s%d, s%d, s%d\ns_mov_b32 s%d, s%d" % (sHK, sW, 8 * 896, sHK, sHK, sT4, sHV, sT5))
        a.e("s_lshl_b32 s%d, s%d, 4\ns_add_u32 s%d, s%d, s%d" % (sT2, sGT, sT2, sT2, sH))
        a.e("s_cmp_eq_u32 s%d, 0\ns_cselect_b32 s%d, 0, %d\ns_cselect_b32 s%d, 0, %d" % (sTY, sT1, WS_OB - WS_OA, sT3, FL_OB - FL_OA))
        a.e("s_lshl_b32 s%d, s%d, 11\ns_add_u32 s%d, s%d, s%d\ns_add_u32 s%d, s%d, %d" % (sOo, sT2, sOo, sOo, sT1, sOo, sOo, WS_OA))
        a.e("s_mul_i32 s%d, s%d, %d\ns_add_u32 s%d, s%d, s%d\ns_add_u32 s%d, s%d, %d" % (sFO, sT2, FS, sFO, sFO, sT3, sFO, sFO, FL_OA))
        a.e("v_lshlrev_b32 v%d, 24, v%d\nv_mov_b32 v%d, 0" % (vF0, vLane, vGZ))
        a.e("v_and_b32 v%d, 7, v%d\nv_lshlrev_b32 v%d, 7, v%d" % (vT1, vLane, vGA, vT1))
        a.e("v_and_b32 v%d, 2, v%d\nv_lshlrev_b32 v%d, 5, v%d\nv_xor_b32 v%d, 112, v%d" % (vT1, vT1, vT1, vT1, vT1, vT1))
        a.e("v_add3_u32 v%d, v%d, v%d, s%d" % (vGA, vGA, vT1, sL))
        a.e("v_lshrrev_b32 v%d, 3, v%d\nv_lshl_add_u32 v%d, v%d, 13, v%d" % (vT1, vLane, vGA, vT1, vGA))

    def setup_late(self):
        a = self.a
        a.e("s_mov_b32 s%d, s%d\ns_mov_b32 s%d, s%d\ns_mov_b32 s%d, 0" % (sWoP, sHK, sIdle, sHV, sOBd))
        a.e("v_lshrrev_b32 v%d, 3, v%d\nv_mul_u32_u24 v%d, 896, v%d" % (vT, vLane, vOX, vT))
        a.e("v_and_b32 v%d, 2, v%d\nv_lshlrev_b32 v%d, 1, v%d" % (vT, vT, vT, vT))
        a.e("v_and_b32 v%d, 7, v%d\nv_xor_b32 v%d, v%d, v%d" % (vT1, vLane, vT, vT, vT1))
        a.e("v_lshl_add_u32 v%d, v%d, 4, v%d" % (vOX, vT, vOX))

    def setup_p3v(self):
        a = self.a
        a.e("v_lshrrev_b32 v%d, 5, v%d\nv_bfe_u32 v%d, v%d, 2, 2" % (vT1, vLane, vT2, vLane))
        a.e("v_lshl_add_u32 v%d, v%d, 2, v%d" % (vT3, vT1, vT2))
        a.e("s_mul_i32 s%d, s%d, %d\ns_add_u32 s%d, s%d, %d" % (sT1, sRT, 112 * 128, sT1, sT1, WO1_LDS))
        a.e("v_lshl_add_u32 v%d, v%d, 7, s%d" % (vT3, vT3, sT1))
        a.e("v_and_b32 v%d, 2, v%d\nv_lshlrev_b32 v%d, 5, v%d" % (vT2, vT2, vT2, vT2))
        a.e("v_and_b32 v%d, 3, v%d\nv_lshlrev_b32 v%d, 3, v%d" % (vT4, vLane, vT4, vT4))
        a.e("v_and_b32 v%d, 31, v%d\nv_mul_u32_u24 v%d, 896, v%d\nv_lshl_add_u32 v%d, v%d, 4, v%d" % (vOA, vLane, vOA, vOA, vOA, vT1, vOA))
        a.e("v_lshlrev_b32 v%d, 9, v%d" % (vT1, vT1))
        for ct in range(2):
            a.e("v_bfe_u32 v%d, v%d, 4, 1\nv_add_u32 v%d, %d, v%d\nv_xor_b32 v%d, s%d, v%d" % (vT, vLane, vT, 2 * ct, vT, vT, sRT, vT))
            a.e("v_lshl_add_u32 v%d, v%d, 5, v%d\nv_xor_b32 v%d, v%d, v%d" % (vT, vT, vT4, vT, vT, vT2))
            a.e("v_add_u32 v%d, v%d, v%d\nv_sub_u32 v%d, v%d, v%d" % (vW1 + ct, vT3, vT, vW1 + 2 + ct, vW1 + ct, vT1))
        a.e("s_mov_b32 s%d, %d\ns_mov_b32 s%d, %d" % (sT3, WO1_LDS + 8192, sD2, -8192))
        a.e("s_cmp_eq_u32 s%d, 0\ns_cselect_b32 s%d, %d, s%d\ns_cselect_b32 s%d, %d, s%d" % (sRT, sT3, WO1_LDS - WO2_HEAD, sT3, sD2, WO2_HEAD, sD2))
        for i in range(4):
            a.e("v_subrev_u32 v%d, s%d, v%d" % (vW2 + i, sT3, vW1 + i))
        a.e("s_mul_i32 s%d, s%d, 24576\ns_add_u32 s%d, s%d, %d" % (sT1, sE, sT1, sT1, RED))
        for b in range(4):
            a.e("s_xor_b32 s%d, s%d, %d\ns_mul_i32 s%d, s%d, 6144\ns_add_u32 s%d, s%d, s%d" % (sT2, sRT, b, sT2, sT2, sT2, sT2, sT1))
            a.e("v_add_u32 v%d, s%d, v%d" % (vRD + b, sT2, vL16))
        a.e("s_mov_b32 s%d, 0\ns_mov_b32 s%d, -1" % (sUP, sUP + 1))

    def o_loads(self, br):
        for i in range(8):
            self.a.vmem("buffer_load_dwordx4 %s, v%d, %s, s%d offen offset:%d sc1" % (vr(OF[br] + 4 * i, 4), vL16, sr(sWS), sOD[br] + (i >> 2), 1024 * (i % 4)), ("o", br, i))

    def wo_load(self, br, i):
        if br == 0:
            self.dma(vOX, sWO1, sWoP, i * 64 * 896, WO1_LDS + i * 8192, "wo1")
        else:
            self.dma(vOX, sWO2, sWoP, i * 64 * 896, wo2_slot(i), "wo2")

    def wo_read(self, br, i, ts=(0, 1)):
        hh, s = i >> 1, i & 1
        for t in ts:
            for ct in range(2):
                d = WF + 4 * ((br * 8 + i) * 2 + ct)
                reg = (vW1, vW2)[br] + ct + (2 if (s == 1 and t == 1) else 0)
                row = 28 * hh + 16 * s + 8 * t
                if br == 1 and row >= 64:
                    row -= 64
                self.a.ds("ds_read_b64_tr_b16 %s, v%d offset:%d" % (vr(d + 2 * t, 2), reg, row * 128), ("wf", br, i))

    def type_a(self):
        a = self.a
        o = self.o
        steps = []
        for p, (mat, slots, tr, acc) in enumerate([(1, A_WK, True, ACC0), (2, A_WV, False, ACC1), (0, A_WQ, True, ACC0)]):
            for c in range(7):
                steps.append(dict(g=7 * p + c, c=c, x=(p == 0), w=[(mat, slots[c])], tr=[tr], acc=[acc], gate=(p == 2), buf=WB + 16 * ((7 * p + c) % 2)))

        def publish(so, area, tag):
            for h in range(2):
                a.vmem("buffer_store_dwordx4 %s, v%d, %s, s%d offen offset:%d sc1" % (vr(PK + 4 * h, 4), vL16, sr(sWS), so, 1024 * h), tag)
                a.ds("ds_write_b128 v%d, %s offset:%d" % (vOwn, vr(PK + 4 * h, 4), area + 1024 * h), "w")
                if h == 0:
                    for k in range(o["spread"]):
                        a.do(lambda: None, 100)

        def epi_k():
            self.stamp(1)
            for r in range(0, 16, 2):
                a.e("v_pk_mul_f32 %s, %s, %s" % (vr(ACC0 + r, 2), vr(ACC0 + r, 2), vr(vS if r < 12 else vS2, 2)))
            self.pack(ACC0, PK)
            publish(sKo, KAREA, "stK")

        def epi_v():
            self.stamp(2)
            self.pack(ACC1, PK)
            self.ones_col(PK, vr(vOne, 2))
            publish(sVo, VAREA, "stV")

        def flag(tag, so):
            def f():
                a.vm.wait(tag)
                self.set_flag(so)
            return f

        def setup_a():
            a.e("v_lshrrev_b32 v%d, 4, v%d\nv_lshl_add_u32 v%d, v%d, 13, v%d" % (vT1, vLane, vGA, vT1, vGA))
            a.e("v_add_u32 v%d, 49152, v%d" % (vGA, vGA))
            a.e("s_mov_b32 exec_lo, 0\ns_mov_b32 exec_hi, 0xff0000\nv_add_u32 v%d, 24576, v%d\ns_mov_b64 exec, -1" % (vGA, vGA))
            a.e("s_lshl_b32 s%d, s%d, 6\ns_add_u32 s%d, s%d, s%d" % (sT1, sH, sT1, sT1, sGT))
            a.e("s_lshl_b32 s%d, s%d, 11\ns_add_u32 s%d, s%d, %d" % (sKo, sT1, sVo, sKo, WS_V))
            a.e("s_mul_i32 s%d, s%d, %d\ns_add_u32 s%d, s%d, %d\ns_add_u32 s%d, s%d, %d" % (sKf, sT1, FS, sVf, sKf, FL_V, sKf, sKf, FL_K))
            a.e("s_mul_i32 s%d, s%d, 24576\ns_lshl_b32 s%d, s%d, 11\ns_add_u32 s%d, s%d, s%d" % (sT1, sE, sT2, sRT, sT1, sT1, sT2))
            a.e("v_add_u32 v%d, s%d, v%d\nv_add_u32 v%d, 16384, v%d\nv_add_u32 v%d, %d, v%d" % (vKA, sT1, vL16, vOwn, vKA, vVA, VAREA, vKA))
            a.e("s_add_u32 s%d, s%d, s%d" % (sHL, sT1, sT2))
            c = f2u(LOG2E / math.sqrt(28.0))
            a.e("v_mov_b32 v%d, 0x%x\nv_mov_b32 v%d, 0x%x\nv_mov_b32 v%d, 0\nv_mov_b32 v%d, 0" % (vS, c, vS + 1, c, vS2, vS2 + 1))
            a.e("s_mov_b32 exec_hi, 0\nv_mov_b32 v%d, 0x%x\nv_mov_b32 v%d, 0x%x\ns_mov_b32 exec_hi, -1" % (vS2, c, vS2 + 1, c))
            a.e("v_mov_b32 v%d, 0x3f803f80\nv_mov_b32 v%d, 0x3f803f80" % (vOne, vOne + 1))
            a.e("v_and_b32 v%d, 1, v%d\nv_mul_u32_u24 v%d, %d, v%d" % (vPA, vLane, vPA, FS, vPA))
            a.e("v_and_b32 v%d, 3, v%d\nv_mul_u32_u24 v%d, %d, v%d" % (vPB, vLane, vPB, FS, vPB))
            for r in range(16):
                c0 = (r & 3) + 8 * (r >> 2)
                a.e("s_bfm_b32 s%d, %d, 0\ns_bfm_b32 s%d, %d, 0" % (sMASK + 2 * r, c0, sMASK + 2 * r + 1, c0 + 4))
            a.e("v_mov_b32 v%d, 0xffff\nv_mov_b32 v%d, 0xffff0000" % (vT1, vT2))
            for i in range(8):
                a.e("v_cndmask_b32 v%d, 0, v%d, s[%d:%d]" % (vT3, vT1, sMASK + 4 * i, sMASK + 4 * i + 1))
                a.e("v_cndmask_b32 v%d, 0, v%d, s[%d:%d]" % (vT4, vT2, sMASK + 4 * i + 2, sMASK + 4 * i + 3))
                a.e("v_or_b32 v%d, v%d, v%d" % (MK + i, vT3, vT4))

        def setup_halo():
            a.e("s_lshl_b32 s%d, s%d, 2\ns_lshl_b32 s%d, s%d, 1\ns_add_u32 s%d, s%d, s%d\ns_sub_u32 s%d, s%d, 8" % (sT1, sRB, sT2, sRT, sT1, sT1, sT2, sT1, sT1))
            a.e("s_max_i32 s%d, s%d, 0\ns_lshl_b32 s%d, s%d, 6\ns_add_u32 s%d, s%d, s%d" % (sT2, sT1, sT3, sH, sT2, sT2, sT3))
            a.e("s_mul_i32 s%d, s%d, %d\ns_add_u32 s%d, s%d, %d\ns_add_u32 s%d, s%d, %d" % (sHFk, sT2, FS, sHFv, sHFk, FL_V, sHFk, sHFk, FL_K))
            a.e("s_lshl_b32 s%d, s%d, 11\ns_cmp_ge_i32 s%d, 0\ns_cselect_b32 s%d, s%d, %d\ns_cselect_b32 s%d, 1, 0" % (sT2, sT2, sT1, sHK, sT2, OOB, sHok))
            a.e("s_add_u32 s%d, s%d, %d" % (sHV, sHK, WS_V))

        def halo_poll(sf, vd, tag):
            return lambda: self.vpoll_issue(vd, vPA, sf, tag)

        def halo_fetch(sf, vd, tag, so, area, nm):
            def f():
                for e in range(2):
                    self.claim(area + 24576 * e, 16384, 99)
                self.vpoll_check(vd, vPA, sf, tag, sHok)
                a.e("s_add_u32 m0, s%d, %d" % (sHL, area))
                for i in range(4):
                    a.vmem("buffer_load_dwordx4 v%d, %s, s%d offen offset:%d sc1 lds" % (vL16, sr(sWS), so, 1024 * i), nm)
                self.stamp(4 if nm == "hK" else 5)
            return f

        fills = {0: [(self.setup_scalar, 6), (self.nonce_issue, 6), (setup_a, 6)], 4: [(self.setup_late, 6), (setup_halo, 6), (self.setup_p3v, 6)],
                 7: [(epi_k, o["A_fk"])], 8: [(self.gate_write, 12)], 14: [(epi_v, o["A_fv"])]}
        blocks = {}
        def add(b, f):
            blocks.setdefault(b, []).append(f)
        add(6, self.nonce_take)
        add(o["A_fk"], flag("stK", sKf)); add(o["A_fv"], flag("stV", sVf))
        add(o["A_pk"], halo_poll(sHFk, vP1, "pK")); add(o["A_hk"], halo_fetch(sHFk, vP1, "pK", sHK, KAREA, "hK"))
        add(o["A_pv"], halo_poll(sHFv, vP2, "pV"))
        self.run_steps(steps, o["LA"], o["LAx"], o["barA"], [], self.load_gate, fills, blocks)
        self.stamp(3)
        if o.get("nofill"):
            a.e("s_branch L_done")
        self.v_fetch = halo_fetch(sHFv, vP2, "pV", sHV, VAREA, "hV")
        a.e("v_mov_b32 v%d, v%d" % (vLG, ACC0 + 12))
        self.pack(ACC0, PK)
        a.vm.wait("hK")
        a.lg.wait_all()
        self.barrier()
        self.stamp(6)
        self.attention()
        self.stamp(7)
        self.store2k(PK2, sOo, "stO")
        a.e("s_cmp_eq_u32 s%d, 1\ns_cbranch_scc1 L_idle" % sIdle)
        nob = a.lab("Lnob")
        a.vm.wait("pO")
        a.e("v_cmp_ne_u32 vcc, v%d, v%d" % (vNV, vP1))
        self.barrier()
        a.e("s_cbranch_vccnz L_p3")
        self.o_loads(0)
        a.e("s_mov_b32 s%d, 1" % sOBd)
        a.e("s_branch L_p3")
        a.e("L_idle:")
        a.e("s_waitcnt vmcnt(0)")
        self.set_flag(sFO)
        a.e("s_branch L_done")
        self.att_rare()

    def attention(self):
        a = self.a
        C, S0, S1, O = 48, 64, 112, 128
        P = [144, 152]; PF = 160
        KF = [168, 176]; VF = [184, 192]
        vM = 200
        S = [S0, S1]
        self.att = dict(S0=S0, O=O, P=P[0], KF=KF[0], VF=VF[0], vM=vM)

        def rdK(d, b):
            for s in range(2):
                a.ds("ds_read_b128 %s, v%d offset:%d" % (vr(KF[b] + 4 * s, 4), vKA, d * 2048 + s * 1024), ("K", d))

        def rdV(d, b):
            for s in range(2):
                a.ds("ds_read_b128 %s, v%d offset:%d" % (vr(VF[b] + 4 * s, 4), vVA, d * 2048 + s * 1024), ("V", d))

        def qk(d, b, dst, cin, s):
            if s == 0:
                a.lg.wait(("K", d))
            a.e("v_mfma_f32_32x32x16_bf16 %s, %s, %s, %s" % (vr(dst, 16), vr(KF[b] + 4 * s, 4), vr(PK + 4 * s, 4), cin if s == 0 else vr(dst, 16)))

        def pv(d, b, p, s, first=False):
            if s == 0:
                a.lg.wait(("V", d))
            a.e("v_mfma_f32_32x32x16_bf16 %s, %s, %s, %s" % (vr(O, 16), vr(VF[b] + 4 * s, 4), vr(p + 4 * s, 4), "0" if (first and s == 0) else vr(O, 16)))

        def exps(blk, lo, hi):
            for r in range(lo, hi):
                a.e("v_exp_f32 v%d, v%d" % (blk + r, blk + r))

        def cvts(blk, p, lo, hi):
            for i in range(lo, hi):
                a.e("v_cvt_pk_bf16_f32 v%d, v%d, v%d" % (p + i, blk + 2 * i, blk + 2 * i + 1))

        AH = self.o["ahead"]
        SR = [S1, 16, 32, S0][:AH] + [S0]
        def sblk(d):
            return ([S1, 16, 32][:AH] + [S0])[(7 - d) % (AH + 1)]
        kb = lambda d: (7 - d) & 1
        wo_q = [(0, i) for i in range(7)]
        def wo_some(n):
            for _ in range(n):
                if wo_q:
                    self.wo_load(*wo_q.pop(0))

        rdK(8, 0); rdK(0, 1)
        qk(8, 0, S0, "0", 0); qk(8, 0, S0, "0", 1)
        qk(0, 1, S1, "0", 0); qk(0, 1, S1, "0", 1)
        rdK(7, 0); rdK(6, 1); rdV(8, 0)
        self.v_fetch()
        self.gate_from(vLG)
        for r in range(16):
            a.e("v_cndmask_b32 v%d, v%d, v%d, s[%d:%d]" % (S0 + r, S0 + r, S1 + r, sMASK + 2 * r, sMASK + 2 * r + 1))
        a.e("v_max3_f32 v%d, v%d, v%d, v%d" % (vM, S0, S0 + 1, S0 + 2))
        a.e("v_max3_f32 v%d, v%d, v%d, v%d" % (vT1, S0 + 3, S0 + 4, S0 + 5))
        for r in (6, 10):
            a.e("v_max3_f32 v%d, v%d, v%d, v%d" % (vM, S0 + r, S0 + r + 1, vM))
            a.e("v_max3_f32 v%d, v%d, v%d, v%d" % (vT1, S0 + r + 2, S0 + r + 3, vT1))
        a.e("v_max3_f32 v%d, v%d, v%d, v%d" % (vM, S0 + 14, S0 + 15, vM))
        a.e("v_max_f32 v%d, v%d, v%d\nv_max_f32 v%d, v%d, v%d" % (vT2, vT1, vM, vM, vT1, vM))
        a.e("v_permlane32_swap_b32 v%d, v%d" % (vT2, vM))
        a.e("v_max_f32 v%d, v%d, v%d" % (vM, vM, vT2))
        a.e("v_sub_f32 v%d, 0, v%d\nv_sub_f32 v%d, 0, v%d" % (C, vM, C + 1, vM))
        for r in range(2, 16, 2):
            a.e("v_pk_mov_b32 %s, %s, %s op_sel:[0,1]" % (vr(C + r, 2), vr(C, 2), vr(C, 2)))
        for r in range(0, 16, 2):
            a.e("v_pk_add_f32 %s, %s, %s" % (vr(S0 + r, 2), vr(S0 + r, 2), vr(C, 2)))
        self.stamp(43)
        done = 0
        for n in range(AH):
            d = 7 - n
            qk(d, kb(d), sblk(d), vr(C, 16), 0)
            exps(S0, done, done + 2); done += 2
            qk(d, kb(d), sblk(d), vr(C, 16), 1)
            rdK(d - 2, kb(d))
            exps(S0, done, done + 3); done += 3
        exps(S0, done, 16)
        self.pack(S0, P[0])
        for i in range(8):
            a.e("v_and_b32 v%d, v%d, v%d" % (PF + i, P[0] + i, MK + i))
        for i in range(8):
            a.e("v_xor_b32 v%d, v%d, v%d" % (P[0] + i, P[0] + i, PF + i))
        pv(8, 0, P[0], 0, True); pv(8, 0, P[0], 1)

        for d in range(7, 0, -1):
            cur = sblk(d)
            pb = P[(8 - d) & 1]
            q = d - AH
            if q >= 1:
                qk(q, kb(q), sblk(q), vr(C, 16), 0)
            exps(cur, 0, 4)
            if q >= 1:
                qk(q, kb(q), sblk(q), vr(C, 16), 1)
            if q - 2 >= 1:
                rdK(q - 2, kb(q))
            if d > 1 and d != 7:
                rdV(d - 1, kb(d - 1))
            if q == 1:
                self.stamp(46)
                self.barrier()
                self.stamp(47)
                wo_q += [(1, i) for i in range(7)]
            exps(cur, 4, 8)
            cvts(cur, pb, 0, 4)
            if d == 7:
                self.stamp(44)
                a.vm.wait("hV")
                self.barrier()
                self.stamp(45)
                rdV(0, 1); rdV(7, 0)
            wo_some(2 if (q <= 1 or d == 7) else 1)
            exps(cur, 8, 12)
            if d != 7:
                pv(d, kb(d), pb, 0)
            wo_some(2 if q <= 1 else 1)
            if d == self.o["A_ob"]:
                assert not wo_q
                self.vpoll_issue(vP1, vPB, sOBf, "pO")
            exps(cur, 12, 16)
            cvts(cur, pb, 4, 8)
            if d == 7:
                pv(0, 1, PF, 0); pv(0, 1, PF, 1)
                rdV(6, 1)
                pv(7, 0, pb, 0)
            pv(d, kb(d), pb, 1)
        a.e("s_mov_b32 s%d, 0x%x\nv_mov_b32 v%d, 0x%x" % (sT1, f2u(2.0 ** -60), vT4, f2u(2.0 ** 60)))
        self.bcast_hi(O + 12, vT2, vT1)
        a.e("v_med3_f32 v%d, v%d, s%d, v%d" % (vT1, vT2, sT1, vT4))
        a.e("v_cmp_neq_f32 vcc, v%d, v%d" % (vT1, vT2))
        a.e("s_cbranch_vccnz L_att_fb")
        a.e("L_att_ok:")
        a.e("v_rcp_f32 v%d, v%d" % (vT2, vT2))
        a.e("v_mul_f32 v%d, v%d, v%d" % (vT2, vT2, vGate))
        self.scale16(O, vT2)
        self.pack(O, PK2)
        self.zero_pad_tr(PK2)

    def att_rare(self):
        a = self.a
        t = self.att
        S0, O, P, KF, VF, vM = (t[k] for k in ("S0", "O", "P", "KF", "VF", "vM"))
        sDmin = sT4
        sD, sPass, sOff = sT2, sT3, sT5
        a.e("L_att_fb:")
        a.e("s_sub_u32 s%d, 8, s%d" % (sDmin, sGT))
        a.e("s_mov_b32 s%d, 0" % sPass)
        a.e("v_mov_b32 v%d, 0x%x\nv_mov_b32 v%d, 0x%x" % (vM, NEG, vT3, NEG))
        for r in range(16):
            a.e("v_mov_b32 v%d, 0" % (O + r))
        a.e("L_fb_pass:")
        a.e("s_max_i32 s%d, s%d, 0" % (sD, sDmin))
        a.e("L_fb_tile:")
        a.e("s_lshl_b32 s%d, s%d, 6\ns_add_u32 s%d, s%d, s%d\ns_add_u32 s%d, s%d, s%d\ns_sub_u32 s%d, s%d, 8" % (sOff, sH, sOff, sOff, sGT, sOff, sOff, sD, sOff, sOff))
        a.e("s_lshl_b32 s%d, s%d, 11\ns_add_u32 s%d, s%d, %d" % (sOff, sOff, sOff, sOff, WS_K))
        a.e("buffer_load_dwordx4 %s, v%d, %s, s%d offen sc1" % (vr(KF, 4), vL16, sr(sWS), sOff))
        a.e("buffer_load_dwordx4 %s, v%d, %s, s%d offen offset:1024 sc1" % (vr(KF + 4, 4), vL16, sr(sWS), sOff))
        a.e("s_lshl_b32 s%d, s%d, 11\nv_add_u32 v%d, s%d, v%d" % (sOff, sD, vT4, sOff, vVA))
        a.e("ds_read_b128 %s, v%d\nds_read_b128 %s, v%d offset:1024" % (vr(VF, 4), vT4, vr(VF + 4, 4), vT4))
        a.e("s_waitcnt vmcnt(0) lgkmcnt(0)")
        a.e("v_mfma_f32_32x32x16_bf16 %s, %s, %s, 0" % (vr(S0, 16), vr(KF, 4), vr(PK, 4)))
        a.e("v_mfma_f32_32x32x16_bf16 %s, %s, %s, %s" % (vr(S0, 16), vr(KF + 4, 4), vr(PK + 4, 4), vr(S0, 16)))
        a.e("s_cmp_eq_u32 s%d, 0\ns_cbranch_scc0 L_fb_n0" % sD)
        for r in range(16):
            a.e("v_cndmask_b32 v%d, v%d, v%d, s[%d:%d]" % (S0 + r, vT3, S0 + r, sMASK + 2 * r, sMASK + 2 * r + 1))
        a.e("L_fb_n0:")
        a.e("s_cmp_eq_u32 s%d, 8\ns_cbranch_scc0 L_fb_n8" % sD)
        for r in range(16):
            a.e("v_cndmask_b32 v%d, v%d, v%d, s[%d:%d]" % (S0 + r, S0 + r, vT3, sMASK + 2 * r, sMASK + 2 * r + 1))
        a.e("L_fb_n8:")
        a.e("s_cmp_eq_u32 s%d, 0\ns_cbranch_scc0 L_fb_p1" % sPass)
        for r in range(0, 16, 2):
            a.e("v_max3_f32 v%d, v%d, v%d, v%d" % (vM, S0 + r, S0 + r + 1, vM))
        a.e("s_branch L_fb_next")
        a.e("L_fb_p1:")
        for r in range(16):
            a.e("v_sub_f32 v%d, v%d, v%d" % (S0 + r, S0 + r, vM))
        for r in range(16):
            a.e("v_exp_f32 v%d, v%d" % (S0 + r, S0 + r))
        self.pack(S0, P)
        a.e("v_mfma_f32_32x32x16_bf16 %s, %s, %s, %s" % (vr(O, 16), vr(VF, 4), vr(P, 4), vr(O, 16)))
        a.e("v_mfma_f32_32x32x16_bf16 %s, %s, %s, %s" % (vr(O, 16), vr(VF + 4, 4), vr(P + 4, 4), vr(O, 16)))
        a.e("L_fb_next:")
        a.e("s_add_u32 s%d, s%d, 1\ns_cmp_le_u32 s%d, 8\ns_cbranch_scc1 L_fb_tile" % (sD, sD, sD))
        a.e("s_cmp_eq_u32 s%d, 1\ns_cbranch_scc1 L_fb_done" % sPass)
        a.e("s_mov_b32 s%d, 1" % sPass)
        a.e("v_mov_b32 v%d, v%d" % (vT2, vM))
        a.e("v_permlane32_swap_b32 v%d, v%d" % (vT2, vM))
        a.e("v_max_f32 v%d, v%d, v%d" % (vM, vM, vT2))
        a.e("s_branch L_fb_pass")
        a.e("L_fb_done:")
        self.bcast_hi(O + 12, vT2, vT1)
        a.e("s_branch L_att_ok")

    def type_b(self):
        a = self.a
        o = self.o
        steps = []
        for c in range(7):
            steps.append(dict(g=c, c=c, x=True, w=[(1, B_WK[c]), (2, B_WV[c])], tr=[False, False], acc=[ACC0, ACC1], gate=False, buf=WB + 32 * (c % 2)))
        QA = 224
        for c in range(7):
            steps.append(dict(g=7 + c, c=c, x=False, w=[(0, B_WQ[c])], tr=[True], acc=[QA], gate=True, buf=(96 if c % 2 == 0 else 48)))

        def setup_b():
            for i in range(2):
                a.e("s_mov_b32 s%d, 0x%x\ns_mov_b32 s%d, 0x%x\ns_mov_b32 s%d, 0x3f803f80" % (sL2E + i, f2u(LOG2E), sEPS + i, f2u(1e-6), sONE + i))
            a.e("s_mov_b32 s%d, 0x3f80\ns_mov_b32 s%d, 0x3f800000" % (sSEL, sSEL + 1))
            a.e("s_lshl_b32 s%d, s%d, 4\ns_add_u32 s%d, s%d, s%d\ns_lshl_b32 s%d, s%d, 11" % (sT1, sH, sT1, sT1, sRB, sT1, sT1))
            a.e("s_lshl_b32 s%d, s%d, 9\ns_add_u32 s%d, s%d, s%d\ns_add_u32 s%d, s%d, %d" % (sT2, sRT, sT1, sT1, sT2, sPo, sT1, WS_KVP))
            a.e("s_lshl_b32 s%d, s%d, 5\ns_lshl_b32 s%d, s%d, 3\ns_add_u32 s%d, s%d, s%d\ns_add_u32 s%d, s%d, s%d" % (sT1, sH, sT2, sRT, sT1, sT1, sT2, sT1, sT1, sRB))
            a.e("s_mul_i32 s%d, s%d, %d\ns_add_u32 s%d, s%d, %d" % (sT1, sT1, FS, sPf, sT1, FL_P))
            a.e("s_bitcmp1_b32 s%d, 0\ns_cselect_b32 s%d, %d, s%d\ns_cselect_b32 s%d, %d, s%d" % (sRT, sPo, OOB, sPo, sPf, OOB, sPf))
            a.e("s_and_b32 s%d, s%d, 1\ns_lshr_b32 s%d, s%d, 1" % (sT2, sRT, sT3, sRT))
            a.e("s_lshl_b32 s%d, s%d, 1\ns_add_u32 s%d, s%d, s%d\ns_lshl_b32 s%d, s%d, 1\ns_add_u32 s%d, s%d, s%d" % (sT1, sH, sT1, sT1, sT2, sT1, sT1, sT1, sT1, sT3))
            a.e("s_mul_i32 s%d, s%d, %d\ns_add_u32 s%d, s%d, %d" % (sT1, sT1, 8 * FS, sPF, sT1, FL_P))
            a.e("s_lshl_b32 s%d, s%d, 15\ns_lshl_b32 s%d, s%d, 14\ns_add_u32 s%d, s%d, s%d" % (sT1, sH, sT3, sT3, sT1, sT1, sT3))
            a.e("s_lshl_b32 s%d, s%d, 10\ns_add_u32 s%d, s%d, s%d\ns_add_u32 s%d, s%d, %d" % (sT2, sT2, sT1, sT1, sT2, sGo, sT1, WS_KVP))
            a.e("v_and_b32 v%d, 7, v%d\nv_mul_u32_u24 v%d, %d, v%d" % (vPA, vLane, vPA, FS, vPA))
            a.e("s_lshl_b32 s%d, s%d, 12\ns_add_u32 s%d, s%d, %d\nv_add_u32 v%d, s%d, v%d" % (sT1, sW, sT1, sT1, B_KVS, vKW, sT1, vL16))
            a.e("s_lshl_b32 s%d, s%d, 14\ns_lshl_b32 s%d, s%d, 10\ns_add_u32 s%d, s%d, s%d\ns_add_u32 s%d, s%d, %d" % (sT1, sE, sT2, sRT, sT1, sT1, sT2, sT1, sT1, B_KVS))
            a.e("v_add_u32 v%d, s%d, v%d" % (vKR, sT1, vL16))
            a.e("s_lshl_b32 s%d, s%d, 12\ns_add_u32 s%d, s%d, %d\nv_add_u32 v%d, s%d, v%d" % (sT1, sE, sT1, sT1, B_EXS, vXR, sT1, vL16))
            a.e("s_lshl_b32 s%d, s%d, 10\nv_add_u32 v%d, s%d, v%d" % (sT2, sRT, vXW, sT2, vXR))

        vSel = 64

        def setup_sel():
            for d in range(4):
                a.e("v_mov_b32 v%d, 0" % (vSel + d))
            for jj in range(8):
                m = (jj & 3) + 8 * (jj >> 2)
                a.e("s_mov_b32 exec_lo, %d\ns_mov_b32 exec_hi, %d\nv_mov_b32 v%d, s%d\ns_mov_b64 exec, -1" % (1 << m, 16 << m, vSel + (jj >> 1), sSEL + (jj & 1)))

        def epi_kv():
            self.stamp(1)
            VP = WB + 24
            self.pack(ACC1, VP)
            self.ones_col(VP, "s[%d:%d]" % (sONE, sONE + 1))
            self.phi(ACC0, WB + 16)
            self.pack(ACC0, ACC0)
            a.e("v_mfma_f32_32x32x16_bf16 %s, %s, %s, 0" % (vr(ACC1, 16), vr(ACC0, 4), vr(VP, 4)))
            a.e("v_mfma_f32_32x32x16_bf16 %s, %s, %s, %s" % (vr(ACC1, 16), vr(ACC0 + 4, 4), vr(VP + 4, 4), vr(ACC1, 16)))
            for q in range(4):
                a.ds("ds_write_b128 v%d, %s offset:%d" % (vKW, vr(ACC1 + 4 * q, 4), 1024 * q), "w")

        def red_kv():
            skip = a.lab("Lnored")
            a.begin()
            a.e("s_bitcmp1_b32 s%d, 0\ns_cbranch_scc1 %s" % (sRT, skip))
            for j in range(8):
                a.raw_ds = None
                a.e("ds_read_b128 %s, v%d offset:%d" % (vr(ACC0 + 4 * j, 4), vKR, 4096 * (j >> 1) + 1024 * (j & 1)))
            a.e("s_waitcnt lgkmcnt(0)")
            for i in range(0, 8, 2):
                a.e("v_pk_add_f32 %s, %s, %s" % (vr(ACC0 + i, 2), vr(ACC0 + i, 2), vr(ACC0 + 8 + i, 2)))
                a.e("v_pk_add_f32 %s, %s, %s" % (vr(ACC0 + 16 + i, 2), vr(ACC0 + 16 + i, 2), vr(ACC0 + 24 + i, 2)))
            for i in range(0, 8, 2):
                a.e("v_pk_add_f32 %s, %s, %s" % (vr(ACC0 + i, 2), vr(ACC0 + i, 2), vr(ACC0 + 16 + i, 2)))
            for i in range(4):
                a.e("v_cvt_pk_bf16_f32 v%d, v%d, v%d" % (ACC0 + 8 + i, ACC0 + 2 * i, ACC0 + 2 * i + 1))
            a.e(skip + ":")
            a.vmem("buffer_store_dwordx4 %s, v%d, %s, s%d offen sc1" % (vr(ACC0 + 8, 4), vL16, sr(sWS), sPo), "stP")
            a.end()

        def flag_p():
            a.vm.wait("stP")
            self.set_flag(sPf)
            self.stamp(2)

        def wo1_part(lo, hi):
            def f():
                for i in range(lo, hi):
                    self.claim(WO1_LDS + i * 8192, 8192, 99)
                    self.wo_load(0, i)
            return f

        fills = {0: [(self.setup_scalar, 3), (setup_b, 6), (self.nonce_issue, 6)], 4: [(self.setup_late, 6)], 5: [(self.gate_write, 6)],
                 7: [(red_kv, o["B_fp"]), (setup_sel, None), (self.setup_p3v, None)]}
        blocks = {}
        def add(b, f):
            blocks.setdefault(b, []).append(f)
        add(6, self.nonce_take)
        add(7, epi_kv)
        add(o["B_fp"], flag_p)
        bw = o["B_wo"]
        add(bw, wo1_part(0, 1)); add(bw + 1, wo1_part(1, 3)); add(bw + 2, wo1_part(3, 5)); add(bw + 3, wo1_part(5, 7))
        add(o["B_pp"], lambda: self.vpoll_issue(vP1, vPA, sPF, "pP"))
        self.run_steps(steps, o["LB"], o["LBx"], o["barB"], [1, 2, 3, 4], self.load_gate, fills, blocks)
        self.stamp(3)
        if o.get("nofill"):
            a.e("s_branch L_done")
        self.barrier()
        self.vpoll_check(vP1, vPA, sPF, "pP")
        self.stamp(4)
        G = 112
        for i in range(8):
            if i % 2 == 0 and i:
                a.e("s_add_u32 s%d, s%d, 4096" % (sGo, sGo))
            a.vmem("buffer_load_dwordx4 %s, v%d, %s, s%d offen offset:%d sc1" % (vr(G + 4 * i, 4), vL16, sr(sWS), sGo, 2048 * (i % 2)), ("g", i))
        self.gate_from(QA + 12)
        self.phi(QA, WB)
        self.pack(QA, ACC1)
        self.zero_pad_tr(ACC1)
        a.e("v_sub_f32 v%d, 1.0, v%d" % (vGate, vGate))
        for i in range(7):
            self.wo_load(1, i)
        for k in range(8):
            if k % 2 == 0:
                a.vm.wait(("g", k + 1))
            a.e("v_mfma_f32_32x32x16_bf16 %s, %s, %s, %s" % (vr(ACC0, 16), vr(vSel, 4), vr(G + 4 * k, 4), "0" if k == 0 else vr(ACC0, 16)))
        for i in range(4):
            a.e("v_cvt_pk_bf16_f32 v%d, v%d, v%d" % (ACC0 + 8 + i, ACC0 + 2 * i, ACC0 + 2 * i + 1))
        self.stamp(43)
        a.ds("ds_write_b128 v%d, %s" % (vXW, vr(ACC0 + 8, 4)), "w")
        a.lg.wait_all()
        self.barrier()
        self.stamp(44)
        for k in range(4):
            a.ds("ds_read_b128 %s, v%d offset:%d" % (vr(G + 4 * k, 4), vXR, 1024 * k), ("kf", k))
        for k in range(4):
            if k % 2 == 0:
                a.lg.wait(("kf", k + 1))
            a.e("v_mfma_f32_32x32x16_bf16 %s, %s, %s, %s" % (vr(ACC0, 16), vr(G + 4 * k, 4), vr(ACC1 + 4 * (k & 1), 4), "0" if k == 0 else vr(ACC0, 16)))
        self.bcast_hi(ACC0 + 12, vT2, vT1)
        a.e("v_add_f32 v%d, s%d, v%d" % (vT2, sEPS, vT2))
        a.e("v_rcp_f32 v%d, v%d" % (vT2, vT2))
        a.e("v_mul_f32 v%d, v%d, v%d" % (vT2, vT2, vGate))
        self.scale16(ACC0, vT2)
        self.pack(ACC0, PK2)
        self.zero_pad_tr(PK2)
        self.store2k(PK2, sOo, "stO")
        self.stamp(7)
        a.vm.wait("wo2")
        self.barrier()

    def p3(self):
        a = self.a
        a.e("L_p3:")

        def part(br, i, waits=True):
            if waits:
                a.vm.wait(("o", br, i))
            for ct in range(2):
                d = WF + 4 * ((br * 8 + i) * 2 + ct)
                acc = ACC0 + 16 * ct
                a.e("v_mfma_f32_32x32x16_bf16 %s, %s, %s, %s" % (vr(acc, 16), vr(d, 4), vr(OF[br] + 4 * i, 4), "0" if (br == 0 and i == 0) else vr(acc, 16)))

        a.vm.clear(); a.lg.clear()
        self.stamp(48)
        slow = a.lab("Lslow"); have = a.lab("Lhave")
        for i in range(self.o["pre"]):
            self.wo_read(0, i)
        a.e("s_cmp_eq_u32 s%d, 1\ns_cbranch_scc0 %s" % (sOBd, slow))
        a.e("s_waitcnt vmcnt(8)")
        self.set_flag(sFO)
        self.stamp(8)
        a.e(have + ":")

        def slow_path():
            a.e(slow + ":")
            a.e("s_waitcnt vmcnt(0)")
            self.set_flag(sFO)
            self.stamp(8)
            self.poll4_issue(sFB)
            a.e("s_branch " + have)
        self.out_of_line.append(slow_path)
        for i in range(self.o["pre"], 8):
            self.wo_read(0, i)
        s2 = a.lab("Lslow2"); h2 = a.lab("Lhave2")
        a.e("s_cmp_eq_u32 s%d, 1\ns_cbranch_scc0 %s" % (sOBd, s2))
        a.e(h2 + ":")

        def slow2():
            got = a.lab("Lgot")
            a.e(s2 + ":")
            self.poll4_test()
            a.e("s_cbranch_scc1 " + h2)
            self.o_loads(0)
            a.e("s_mov_b32 s%d, 1\ns_branch %s" % (sOBd, h2))
        self.out_of_line.append(slow2)
        for i in range(8):
            if i == 4:
                self.wo_read(1, 4, (0,))
                for r in range(4):
                    a.e("v_subrev_u32 v%d, s%d, v%d" % (vW2 + r, sD2, vW2 + r))
                self.wo_read(1, 4, (1,))
            else:
                self.wo_read(1, i)
        self.stamp(49)
        s3 = a.lab("Lslow3"); h3 = a.lab("Lhave3")
        a.e("s_cmp_eq_u32 s%d, 1\ns_cbranch_scc0 %s" % (sOBd, s3))
        a.e(h3 + ":")

        def slow3():
            a.e(s3 + ":")
            self.poll4(sFB)
            self.o_loads(0)
            a.e("s_branch " + h3)
        self.out_of_line.append(slow3)
        self.stamp(10)
        late = a.lab("Llate"); late2 = a.lab("Llate2"); pa = a.lab("Lpa")
        self.poll4_issue(sFA)
        self.poll4_test()
        a.e("s_cbranch_scc1 " + late)
        self.stamp(12)
        a.vm.clear()
        self.o_loads(1)
        a.e("s_waitcnt vmcnt(8)")
        for i in range(8):
            part(0, i)
        a.e(pa + ":")

        def late_path():
            a.e(late + ":")
            a.e("s_waitcnt vmcnt(0)")
            self.poll4_issue(sFA)
            for i in range(4):
                part(0, i, False)
            self.poll4_test()
            a.e("s_cbranch_scc1 " + late2)
            self.stamp(12)
            self.o_loads(1)
            for i in range(4, 8):
                part(0, i, False)
            a.e("s_branch " + pa)
            a.e(late2 + ":")
            for i in range(4, 8):
                part(0, i, False)
            self.poll4(sFA)
            self.stamp(12)
            self.o_loads(1)
            a.e("s_branch " + pa)
        self.out_of_line.append(late_path)
        self.stamp(11)
        for i in range(8):
            part(1, i)
        self.stamp(13)
        for b in range(1, 4):
            for g in range(2):
                a.ds("ds_write_b128 v%d, %s offset:%d" % (vRD + b, vr(ACC0 + 8 * b + 4 * g, 4), (b - 1) * 2048 + g * 1024), "w")
        a.lg.wait_all()
        self.stamp(53)
        self.barrier()
        self.stamp(54)
        for k in range(6):
            a.ds("ds_read_b128 %s, v%d offset:%d" % (vr(48 + 4 * k, 4), vRD, k * 1024), ("rd", k))
        for k in range(6):
            if k % 2 == 0:
                a.lg.wait(("rd", k + 1))
            for i in (0, 2):
                r = ACC0 + 4 * (k & 1) + i
                a.e("v_pk_add_f32 %s, %s, %s" % (vr(r, 2), vr(r, 2), vr(48 + 4 * k + i, 2)))
        for i in range(4):
            a.e("v_cvt_pk_bf16_f32 v%d, v%d, v%d" % (72 + i, ACC0 + 2 * i, ACC0 + 2 * i + 1))
        a.e("v_permlane32_swap_b32 v72, v74\nv_permlane32_swap_b32 v73, v75")
        a.vmem("buffer_store_dwordx4 v[72:75], v%d, %s, s%d offen" % (vOA, sr(sOUT), sOut))
        self.stamp(14)

    def build(self):
        a = self.a
        amp = self.o.get("amp")
        a.e("; @launch grid=(256,1,1) block=(512,1,1) lds=163840")
        a.e('.amdgcn_target "amdgcn-amd-amdhsa--gfx950"')
        a.e(".text\n.globl %s\n.p2align 8\n.type %s,@function\n%s:" % (NAME, NAME, NAME))
        if self.prof:
            a.e("s_memtime s[98:99]\ns_memrealtime s[96:97]")
        if amp:
            a.e("s_memtime s[98:99]" if amp[0] == "clk" else "s_memrealtime s[98:99]")
        a.e("s_cmp_ge_u32 s2, 256\ns_cbranch_scc1 L_end")
        a.e("s_load_dwordx16 s[4:19], s[0:1], 0\ns_load_dwordx4 s[20:23], s[0:1], 64")
        a.e("v_lshrrev_b32 v%d, 6, v0\nv_and_b32 v%d, 63, v0" % (vT, vLane))
        a.e("v_readfirstlane_b32 s%d, v%d" % (sW, vT))
        a.e("v_lshlrev_b32 v%d, 4, v%d" % (vL16, vLane))
        a.e("s_and_b32 s%d, s2, 3\ns_lshl_b32 s%d, s%d, 2\ns_lshr_b32 s%d, s2, 6\ns_add_u32 s%d, s%d, s%d" % (sT1, sT1, sT1, sRB, sRB, sRB, sT1))
        a.e("s_bfe_u32 s%d, s2, 0x10002\ns_lshl_b32 s%d, s%d, 2\ns_bfe_u32 s%d, s2, 0x20004\ns_add_u32 s%d, s%d, s%d" % (sT1, sT1, sT1, sHP, sHP, sHP, sT1))
        a.e("s_bfe_u32 s%d, s2, 0x10003" % sTY)
        a.e("s_and_b32 s%d, s%d, 3\ns_lshr_b32 s%d, s%d, 2\ns_lshl_b32 s%d, s%d, 10" % (sRT, sW, sE, sW, sL, sW))
        a.e("s_lshl_b32 s%d, s%d, 4\ns_add_u32 s%d, s%d, s%d\ns_mul_i32 s%d, s%d, %d" % (sXo, sRB, sXo, sXo, sW, sXo, sXo, 8 * 896))
        a.e("s_mul_i32 s%d, s%d, %d\ns_mul_i32 s%d, s%d, 112\ns_add_u32 s%d, s%d, s%d" % (sWo, sW, 8 * 2688, sT1, sHP, sWo, sWo, sT1))
        a.e("v_lshrrev_b32 v5, 3, v%d\nv_and_b32 v6, 7, v%d" % (vLane, vLane))
        a.e("s_and_b32 s%d, s%d, 1\ns_lshl_b32 s%d, s%d, 2" % (sT1, sW, sT1, sT1))
        a.e("v_lshrrev_b32 v7, 1, v5\nv_add_u32 v7, s%d, v7\nv_xor_b32 v7, v7, v6" % sT1)
        a.e("v_mul_u32_u24 v%d, 896, v5\nv_lshl_add_u32 v%d, v7, 4, v%d" % (vOX, vOX, vOX))
        a.e("v_and_b32 v7, 2, v5\nv_lshlrev_b32 v7, 1, v7\nv_xor_b32 v7, v7, v6")
        a.e("v_mul_u32_u24 v%d, 2688, v5\nv_lshl_add_u32 v%d, v7, 4, v%d" % (vOW, vOW, vOW))
        a.e("s_waitcnt lgkmcnt(0)")
        if self.prof:
            a.e("s_mov_b32 s3, s98\nv_mov_b32 v255, 0\nv_writelane_b32 v255, s96, 17")
        if amp:
            a.e("s_mov_b32 s3, s98")
        self.srd(sX, 4, 2048 * 896)
        a.e("s_cmp_eq_u32 s%d, 0\ns_cselect_b32 s%d, s6, s12\ns_cselect_b32 s%d, s7, s13\ns_mov_b32 s%d, %d\ns_mov_b32 s%d, 0x20000" % (sTY, sWm, sWm + 1, sWm + 2, 448 * 2688, sWm + 3))
        a.e("s_cmp_eq_u32 s%d, 0\ns_cbranch_scc0 L_typeB" % sTY)
        a.vm.clear(); a.lg.clear()
        self.type_a()
        a.e("L_typeB:")
        a.vm.clear(); a.lg.clear()
        self.type_b()
        self.p3()
        a.e("L_done:")
        if self.prof:
            a.e("s_lshl_b32 s%d, s2, 3\ns_add_u32 s%d, s%d, s%d\ns_lshl_b32 s%d, s%d, 8\ns_add_u32 s%d, s%d, %d" % (sT1, sT1, sT1, sW, sT1, sT1, sT1, sT1, WS_PROF))
            a.e("s_waitcnt vmcnt(0)")
            self.stamp(15)
            a.e("s_memrealtime s[100:101]\ns_waitcnt lgkmcnt(0)\nv_writelane_b32 v255, s100, 16")
            a.e("v_lshlrev_b32 v%d, 2, v%d" % (vT, vLane))
            a.e("buffer_store_dword v255, v%d, %s, s%d offen" % (vT, sr(sWS), sT1))
        if amp:
            kind, wg, mult = amp[:3]
            a.e("s_cmp_lg_u32 s2, %d\ns_cbranch_scc1 L_end\ns_cmp_lg_u32 s%d, 4\ns_cbranch_scc1 L_end" % (wg, sW))
            a.e("s_waitcnt vmcnt(0)")
            a.e("s_memtime s[98:99]" if kind == "clk" else "s_memrealtime s[98:99]")
            if len(amp) > 3:
                a.e("s_waitcnt lgkmcnt(0)\nv_readfirstlane_b32 s98, v255\ns_nop 3")
            a.e("s_memrealtime s[96:97]\ns_waitcnt lgkmcnt(0)\ns_sub_u32 s98, s98, s3\ns_mul_i32 s98, s98, %d" % mult)
            a.e("L_amp:\ns_sleep 8\ns_memrealtime s[94:95]\ns_waitcnt lgkmcnt(0)\ns_sub_u32 s94, s94, s96\ns_cmp_lt_u32 s94, s98\ns_cbranch_scc1 L_amp")
        a.e("L_end:\ns_endpgm")
        for f in self.out_of_line:
            f()
        a.e('.section .rodata,"a"\n.p2align 6\n.amdhsa_kernel %s' % NAME)
        a.e("  .amdhsa_next_free_vgpr 256\n  .amdhsa_next_free_sgpr 102\n  .amdhsa_accum_offset 256\n  .amdhsa_group_segment_fixed_size 0\n  .amdhsa_kernarg_size 80\n  .amdhsa_user_sgpr_count 2\n  .amdhsa_user_sgpr_kernarg_segment_ptr 1\n  .amdhsa_system_sgpr_workgroup_id_x 1\n.end_amdhsa_kernel")
        text, n = a.finish()
        return text


if __name__ == "__main__":
    prof = "prof" in sys.argv[2:]
    opts = {}
    for x in sys.argv[2:]:
        if "=" in x:
            k, v = x.split("=", 1)
            opts[k] = eval(v)
    open(sys.argv[1], "w").write(Gen(prof=prof, opts=opts).build())
```
